```python
import torch

def _softmax(x, axis=-1):
    return torch.softmax(x, dim=axis)
def _gelu(x):
    return torch.nn.functional.gelu(x, approximate="tanh")
def _silu(x):
    return torch.nn.functional.silu(x)
def _sigmoid(x):
    return torch.sigmoid(x)
def _layernorm(x, axis=-1, eps=1e-5):
    m = x.mean(dim=axis, keepdim=True)
    v = x.var(dim=axis, keepdim=True, unbiased=False)
    return (x - m) / torch.sqrt(v + eps)
def _scatter_add(tgt, idx, src, axis=0):
    return tgt.clone().index_add_(axis, idx, src)
def _segment_sum(src, seg, n):
    out = torch.zeros((n,) + src.shape[1:], dtype=src.dtype)
    return out.index_add_(0, seg, src)
def _pad(x, pw):
    flat = tuple(v for pair in reversed(pw) for v in pair)
    return torch.nn.functional.pad(x, flat)

kernel_name = 'concat_heads__spectral_fnet__sliding_block__prompt'

def setup_inputs():

    _w = (lambda a: (lambda t: t.to(torch.bfloat16) if t.is_floating_point() else t)(torch.as_tensor(a)))
    def _A_setup():
        B, S, D = 1, 2048, 448
        ns = torch.arange(S)[:, None] * torch.arange(S)[None, :]
        nd = torch.arange(D)[:, None] * torch.arange(D)[None, :]
        Ws_re = torch.cos(-2.0 * torch.pi * ns / S).to(float)
        Ws_im = torch.sin(-2.0 * torch.pi * ns / S).to(float)
        Wd_re = torch.cos(-2.0 * torch.pi * nd / D).to(float)
        Wd_im = torch.sin(-2.0 * torch.pi * nd / D).to(float)
        return {
            "x": _w((lambda *s: torch.randn(*s, dtype=torch.bfloat16) * 0.05)(B, S, D)),
            "dft_seq_re": _w(Ws_re),
            "dft_seq_im": _w(Ws_im),
            "dft_hid_re": _w(Wd_re),
            "dft_hid_im": _w(Wd_im),
        }
    _A_in = _A_setup()

    def _B_setup():
        B, S, D = 1, 2048, 448
        return {
            "x": _w((lambda *s: torch.randn(*s, dtype=torch.bfloat16) * 0.2)(B, S, D)),
            "wqkv": _w((lambda *s: torch.randn(*s, dtype=torch.bfloat16) * 0.8)(D, 3 * D)),
            "wo": _w((lambda *s: torch.randn(*s, dtype=torch.bfloat16) * 0.2)(D, D)),
        }
    _B_in = _B_setup()

    return {
        "A_x": _A_in["x"],
        "A_dft_seq_re": _A_in["dft_seq_re"],
        "A_dft_seq_im": _A_in["dft_seq_im"],
        "A_dft_hid_re": _A_in["dft_hid_re"],
        "A_dft_hid_im": _A_in["dft_hid_im"],
        "B_x": _B_in["x"],
        "B_wqkv": _B_in["wqkv"],
        "B_wo": _B_in["wo"],
    }

def reference(A_x, A_dft_seq_re, A_dft_seq_im, A_dft_hid_re, A_dft_hid_im, B_x, B_wqkv, B_wo):
    def _A_ref(x, dft_seq_re, dft_seq_im, dft_hid_re, dft_hid_im):
        a = torch.einsum("bsd,ed->bse", x, dft_hid_re)
        b = torch.einsum("bsd,ed->bse", x, dft_hid_im)
        y = torch.einsum("ts,bse->bte", dft_seq_re, a) - torch.einsum("ts,bse->bte", dft_seq_im, b)
        return y

    def _B_ref(x, wqkv, wo):
        B, S, D = x.shape
        H = 16; Dh = D // H; W = 256
        qkv = (lambda x, *d: x.permute(*d))((x @ wqkv).reshape(B, S, 3, H, Dh), 2, 0, 3, 1, 4)
        q, k, v = qkv[0], qkv[1], qkv[2]
        scores = torch.einsum("bhqd,bhkd->bhqk", q, k) * (Dh ** -0.5)
        idx = torch.arange(S)
        mask = (idx[:, None] - idx[None, :] >= 0) & (idx[:, None] - idx[None, :] < W)
        scores = torch.where(mask[None, None], scores, -1e9)
        p = _softmax(scores, axis=-1)
        o = torch.einsum("bhqk,bhkd->bhqd", p, v)
        return (lambda x, *d: x.permute(*d))(o, 0, 2, 1, 3).reshape(B, S, D) @ wo

    a = _A_ref(A_x, A_dft_seq_re, A_dft_seq_im, A_dft_hid_re, A_dft_hid_im)
    b = _B_ref(B_x, B_wqkv, B_wo)
    return torch.concatenate([a, b], axis=-1)
```

```python
import re

TRANS = ("v_exp_f32", "v_log_f32", "v_rcp_f32", "v_rsq_f32", "v_sqrt_f32", "v_sin_f32", "v_cos_f32",
         "v_rcp_iflag_f32")


def regs_of(tok):
    tok = tok.strip()
    tok = tok.lstrip("-")
    if tok.startswith("abs(") or tok.startswith("|"):
        tok = tok.replace("abs(", "").replace(")", "").replace("|", "")
    if tok.startswith("neg("):
        tok = tok[4:-1]
    if tok == "vcc":
        return {("s", 106), ("s", 107)}
    if tok == "vcc_lo":
        return {("s", 106)}
    if tok == "vcc_hi":
        return {("s", 107)}
    if tok == "exec":
        return {("s", 126), ("s", 127)}
    if tok == "exec_lo":
        return {("s", 126)}
    if tok == "exec_hi":
        return {("s", 127)}
    if tok == "m0":
        return {("s", 124)}
    m = re.fullmatch(r"([vsa])(\d+)", tok)
    if m:
        return {(m.group(1), int(m.group(2)))}
    m = re.fullmatch(r"([vsa])\[(\d+):(\d+)\]", tok)
    if m:
        return {(m.group(1), i) for i in range(int(m.group(2)), int(m.group(3)) + 1)}
    return set()


class Ins:
    __slots__ = ("text", "mn", "ops", "mods", "kind", "w", "r", "srcc", "srcab", "passes", "target", "sdata",
                 "nopn", "label")

    def __init__(self, text):
        self.text = text
        self.label = None
        t = text.split(";")[0].strip()
        self.kind = "other"
        self.w = set()
        self.r = set()
        self.srcc = set()
        self.srcab = set()
        self.sdata = set()
        self.passes = 0
        self.target = None
        self.nopn = 1
        if t.endswith(":"):
            self.label = t[:-1]
            self.kind = "label"
            self.mn = ""
            self.nopn = 0
            return
        if t.startswith(".") or not t:
            self.kind = "dir"
            self.mn = ""
            self.nopn = 0
            return
        parts = t.split(None, 1)
        mn = parts[0]
        rest = parts[1] if len(parts) > 1 else ""
        mn = re.sub(r"_(e32|e64)$", "", mn)
        self.mn = mn
        raw = [x.strip() for x in rest.split(",")] if rest else []
        ops = []
        mods = []
        for i, x in enumerate(raw):
            sp = x.split()
            if not sp:
                continue
            ops.append(sp[0])
            mods += sp[1:]
        self.ops = ops
        self.mods = mods
        R = lambda i: regs_of(ops[i]) if i < len(ops) else set()
        allr = lambda a: set().union(*[regs_of(o) for o in ops[a:]]) if len(ops) > a else set()
        if mn == "s_nop":
            self.kind = "nop"
            self.nopn = int(ops[0], 0) + 1
        elif mn.startswith("v_mfma"):
            self.kind = "mfma"
            self.w = R(0)
            self.srcab = R(1) | R(2)
            self.srcc = R(3)
            self.r = self.srcab | self.srcc
            self.passes = 8 if "32x32" in mn else 4
        elif mn.startswith("v_"):
            self.kind = "valu"
            if mn.startswith("v_permlane") and "swap" in mn:
                self.w = R(0) | R(1)
                self.r = R(0) | R(1)
            elif mn.startswith("v_cmp"):
                self.w = R(0)
                self.r = allr(1)
            elif mn in ("v_add_co_u32", "v_sub_co_u32", "v_addc_co_u32", "v_subb_co_u32"):
                self.w = R(0) | R(1)
                self.r = allr(2)
            elif mn.startswith("v_fmac") or mn.startswith("v_pk_fmac") or mn == "v_writelane_b32":
                self.w = R(0)
                self.r = allr(0)
            elif mn == "v_nop":
                pass
            else:
                self.w = R(0)
                self.r = allr(1)
        elif mn.startswith("ds_"):
            self.kind = "ds"
            if mn.startswith("ds_read") or "_rtn" in mn or mn.startswith("ds_bpermute") or mn.startswith(
                    "ds_swizzle") or mn.startswith("ds_permute"):
                self.w = R(0)
                self.r = allr(1)
            else:
                self.r = allr(0)
        elif mn.startswith("buffer_") or mn.startswith("global_"):
            self.kind = "vmem"
            lds = "lds" in mods or "_lds_" in mn
            if lds:
                self.r = allr(0) | {("s", 124)}
                self.kind = "vmemlds"
            elif "_load" in mn:
                self.w = R(0)
                self.r = allr(1)
            elif "atomic" in mn:
                self.r = allr(0)
                if "sc0" in mods:
                    self.w = R(0)
                    if mn.startswith("global_"):
                        self.r = allr(1)
            else:
                self.r = allr(0)
                if "x3" in mn or "x4" in mn:
                    self.sdata = R(0) if mn.startswith("buffer_") else R(1)
        elif mn.startswith("s_"):
            self.kind = "salu"
            if mn in ("s_branch",) or mn.startswith("s_cbranch"):
                self.kind = "branch"
                self.target = ops[0]
                if "vcc" in mn:
                    self.r = regs_of("vcc")
                if "exec" in mn:
                    self.r = regs_of("exec")
            elif mn in ("s_waitcnt", "s_barrier", "s_endpgm", "s_setprio", "s_sleep"):
                pass
            elif mn.startswith("s_cmp") or mn.startswith("s_bitcmp"):
                self.r = allr(0)
            elif mn.startswith("s_load") or mn.startswith("s_mem"):
                self.kind = "smem"
                self.w = R(0)
                self.r = allr(1)
            else:
                self.w = R(0)
                self.r = allr(1)
                if "saveexec" in mn:
                    self.w |= regs_of("exec")


def _v(s):
    return {x for x in s if x[0] in "va"}


def _s(s):
    return {x for x in s if x[0] == "s"}


def need(p, c):
    n = 0
    if p.kind == "valu":
        pv = _v(p.w)
        ps = _s(p.w)
        if c.kind == "mfma" and pv & c.r:
            n = max(n, 2)
        if c.kind == "valu":
            if c.mn in ("v_readfirstlane_b32", "v_readlane_b32") and pv & c.r:
                n = max(n, 1)
            if c.mn.startswith("v_permlane") and pv & c.r:
                n = max(n, 2)
            if any(m.startswith(("row_", "quad_perm", "wave_")) for m in c.mods) and pv & c.r:
                n = max(n, 2)
            if p.mn in TRANS and pv & c.r:
                n = max(n, 1)
            if ps & c.r:
                n = max(n, 4 if c.mn in ("v_readlane_b32", "v_writelane_b32") else 2)
            if ("op_sel" in " ".join(p.mods) or "sdwa" in p.mn) and pv & (c.r | c.w):
                n = max(n, 1)
        if c.kind in ("vmem", "vmemlds") and ps & c.r:
            n = max(n, 5)
        if c.kind in ("salu", "branch", "smem") and ps & c.r:
            n = max(n, 1)
        if p.mn in TRANS and c.kind in ("vmem", "ds", "vmemlds") and pv & c.r:
            n = max(n, 1)
    if p.kind == "mfma":
        big = p.passes == 8
        if c.kind == "mfma":
            if p.w & c.srcab:
                n = max(n, 12 if big else 8)
            if p.w & c.srcc and not (p.w == c.srcc and p.passes == c.passes):
                n = max(n, 10 if big else 6)
            if p.w & c.w and not (p.w == c.srcc and p.passes == c.passes):
                n = max(n, 10 if big else 6)
        elif c.kind in ("valu", "ds", "vmem", "vmemlds"):
            if p.w & (c.r | c.w):
                n = max(n, 12 if big else 8)
            if p.srcc & c.w:
                n = max(n, 7 if big else 3)
    if p.kind == "salu" and ("s", 124) in p.w and c.kind == "vmemlds":
        n = max(n, 1)
    if p.kind == "vmem" and p.sdata and c.kind in ("valu", "mfma") and p.sdata & c.w:
        n = max(n, 2)
    if p.kind == "vmem" and p.sdata and c.kind in ("ds", "vmem") and p.sdata & c.w:
        n = max(n, 1)
    return n


def fix_hazards(lines, verbose=False):
    ins = [Ins(l) for l in lines]
    total = 0
    while True:
        labels = {x.label: i for i, x in enumerate(ins) if x.label}
        jumps = {}
        for i, x in enumerate(ins):
            if x.kind == "branch":
                jumps.setdefault(labels[x.target], []).append(i)

        def preds(i):
            out = []
            if i > 0 and not (ins[i - 1].mn in ("s_branch", "s_endpgm")):
                out.append(i - 1)
            out += jumps.get(i, [])
            return out

        changed = False
        new = []
        for i, c in enumerate(ins):
            if c.kind in ("label", "dir", "nop", "other"):
                new.append(c)
                continue
            worst = 0
            stack = [(p, 0) for p in preds(i)]
            seen = {}
            while stack:
                j, d = stack.pop()
                if d >= 12 or seen.get(j, 99) <= d:
                    continue
                seen[j] = d
                p = ins[j]
                k = need(p, c) - d
                if k > worst:
                    worst = k
                    culprit = p
                for q in preds(j):
                    stack.append((q, d + p.nopn))
            if worst > 0:
                if verbose:
                    print("nop %d before [%s] after [%s]" % (worst, c.text.strip(), culprit.text.strip()))
                new.append(Ins("s_nop %d" % (worst - 1)))
                total += worst
                new.append(c)
                new += ins[i + 1:]
                changed = True
                start = i
                break
            new.append(c)
        ins = new
        if not changed:
            break
    return [x.text for x in ins], total


def fix_hazards_fast(lines, verbose=False):
    ins = [Ins(l) for l in lines]
    total = 0
    i = 0
    labels = None
    for _ in range(50):
        labels = {x.label: x for x in ins if x.label}
        idx = {id(x): k for k, x in enumerate(ins)}
        jumps = {}
        for x in ins:
            if x.kind == "branch":
                jumps.setdefault(id(labels[x.target]), []).append(x)
        out = []
        pos = {}
        changed = False
        extra = {}

        def preds(k):
            o = []
            if k > 0 and ins[k - 1].mn not in ("s_branch", "s_endpgm"):
                o.append(k - 1)
            for x in jumps.get(id(ins[k]), []):
                o.append(idx[id(x)])
            return o

        for k, c in enumerate(ins):
            if c.kind in ("label", "dir", "nop", "other"):
                out.append(c)
                continue
            worst = 0
            culprit = None
            stack = [(p, 0) for p in preds(k)]
            seen = {}
            while stack:
                j, d = stack.pop()
                if d >= 12 or seen.get(j, 99) <= d:
                    continue
                seen[j] = d
                p = ins[j]
                kk = need(p, c) - d
                if kk > worst:
                    worst = kk
                    culprit = p
                for q in preds(j):
                    stack.append((q, d + p.nopn + extra.get(id(p), 0)))
            if worst > 0:
                if verbose:
                    print("nop %d before [%s] after [%s]" % (worst, c.text.strip(), culprit.text.strip()))
                out.append(Ins("    s_nop %d" % (worst - 1)))
                extra[id(c)] = worst
                total += worst
                changed = True
            out.append(c)
        ins = out
        if not changed:
            break
    return [x.text for x in ins], total


class Asm:
    def __init__(self):
        self.lines = []
        self._lab = 0

    def __call__(self, s):
        for l in s.split("\n"):
            l = l.strip()
            if not l:
                continue
            if l.endswith(":"):
                self.lines.append(l)
            else:
                self.lines.append("    " + l)

    def label(self, base="L"):
        self._lab += 1
        return "%s_%d" % (base, self._lab)

    def c(self, text):
        self.lines.append("    ; " + text)


def vr(a, n=1):
    return "v%d" % a if n == 1 else "v[%d:%d]" % (a, a + n - 1)


def sr(a, n=1):
    return "s%d" % a if n == 1 else "s[%d:%d]" % (a, a + n - 1)
```

```python
import sys, struct, math
from asmlib import *

NAME = "concat_heads__spectral_fnet__sliding_block__prompt"


class Cfg:
    stamps = False
    nt_in = ""
    out_pol = " sc1"
    wsbase = 0
    prio = True


KOFF, VOFF, GOFF, OOFF, FOFF, TOFF, WSSZ = 0, 0x1C0000, 0x380000, 0x540000, 0x740000, 0x780000, 0x800000
F_KV, F_O, F_G = 0, 224, 480
WKV, XR, AR, SY, LDSSZ = 0, 57344, 106496, 155648, 156672
KA, VA = 0, 24576
WQ = XR + 16384
SY_CKV, SY_CG, SY_B, SY_A = SY, SY + 4, SY + 16, SY + 32
OOB = 0x40000000


def f2u(x):
    return struct.unpack("<I", struct.pack("<f", x))[0]


class G(Asm):
    def __init__(self, cfg):
        super().__init__()
        self.cfg = cfg
        self.vq = []
        self.dq = []
        self.nst = 0

    def vm(self, tag, text):
        self(text)
        self.vq.append(tag)

    def ds(self, tag, text):
        self(text)
        self.dq.append(tag)
        assert len(self.dq) <= 15 or True

    @staticmethod
    def _cnt(q, tag):
        last = max(k for k, t in enumerate(q) if t == tag)
        n = len(q) - 1 - last
        del q[:last + 1]
        return n

    def wait(self, vm=None, ds=None):
        p = []
        if vm is not None:
            if vm == "*":
                self.vq.clear()
                p.append("vmcnt(0)")
            elif vm in self.vq:
                p.append("vmcnt(%d)" % self._cnt(self.vq, vm))
        if ds is not None:
            if ds == "*":
                self.dq.clear()
                p.append("lgkmcnt(0)")
            elif ds in self.dq:
                n = self._cnt(self.dq, ds)
                assert n <= 15
                p.append("lgkmcnt(%d)" % n)
        if p:
            self("s_waitcnt " + " ".join(p))

    def snap(self):
        return (list(self.vq), list(self.dq))

    def restore(self, s):
        self.vq, self.dq = list(s[0]), list(s[1])

    def stamp(self, k):
        if not self.cfg.stamps:
            return
        self("s_memrealtime s[100:101]")
        self("s_waitcnt lgkmcnt(0)")
        self.dq.clear()
        self("s_mov_b32 s%d, s100" % (84 + k))

    def stamp_flush(self):
        if not self.cfg.stamps:
            return
        self("s_mov_b64 exec, -1")
        for k in range(16):
            self("v_writelane_b32 v1, s%d, %d" % (84 + k, k))
        self("s_lshl_b32 s100, s2, 3")
        self("s_add_u32 s100, s100, s3")
        self("s_lshl_b32 s100, s100, 6")
        self("s_add_u32 s100, s100, %d" % TOFF)
        self("v_lshlrev_b32 v2, 2, v0")
        self("s_mov_b64 exec, 0xffff")
        self("buffer_store_dword v1, v2, s[24:27], s100 offen")


sX, sJ, sI, sH, sHL, sW = 32, 33, 34, 35, 36, 37
sT0, sT1, sT2, sT3 = 38, 39, 40, 41
sCNT = 42
sHASKV, sC = 43, 44


def lds_wait_words(a, vaddr, stage, vtmp):
    L = a.label("spin")
    Lx = a.label("spinx")
    a("s_mov_b32 s%d, 0x100000" % sCNT)
    a(L + ":")
    a("ds_read_b32 v%d, v%d" % (vtmp, vaddr))
    a("s_sub_u32 s%d, s%d, 1" % (sCNT, sCNT))
    a("s_cbranch_scc1 %s" % Lx)
    a("s_waitcnt lgkmcnt(0)")
    a("v_cmp_gt_u32 vcc, %d, v%d" % (stage, vtmp))
    a("s_cbranch_vccnz %s" % L)
    a(Lx + ":")
    a.dq.clear()


def lds_set_word(a, vaddr, stage, vtmp):
    a("v_mov_b32 v%d, %d" % (vtmp, stage))
    a.ds("sync", "ds_write_b32 v%d, v%d" % (vaddr, vtmp))


def poll_atomic(a, voff, want, vtmp):
    L = a.label("poll")
    Lx = a.label("pollx")
    a("s_mov_b32 s%d, 0x20000" % sCNT)
    a(L + ":")
    a("v_mov_b32 v%d, 0" % vtmp)
    a("buffer_atomic_add v%d, v%d, s[24:27], 0 offen sc0 sc1" % (vtmp, voff))
    a("s_sub_u32 s%d, s%d, 1" % (sCNT, sCNT))
    a("s_cbranch_scc1 %s" % Lx)
    a("s_waitcnt vmcnt(0)")
    a("v_cmp_ne_u32 vcc, %d, v%d" % (want, vtmp))
    a("s_cbranch_vccnz %s" % L)
    a(Lx + ":")
    a("s_waitcnt vmcnt(0)")
    a.vq.clear()


def srd(a, d, lo, size):
    a("s_mov_b32 s%d, s%d" % (d, lo))
    a("s_mov_b32 s%d, s%d" % (d + 1, lo + 1))
    a("s_mov_b32 s%d, %s" % (d + 2, size))
    a("s_mov_b32 s%d, 0x20000" % (d + 3))


def entry(a):
    cfg = a.cfg
    a("s_cmp_ge_u32 s2, 256")
    a("s_cbranch_scc1 L_end")
    a("s_getpc_b64 s[46:47]")
    a("s_load_dwordx16 s[4:19], s[0:1], 0")
    a("s_load_dwordx4 s[20:23], s[0:1], 64")
    a("s_load_dwordx2 s[24:25], s[0:1], 80")
    if cfg.stamps:
        a("s_memrealtime s[100:101]")
    a("v_lshrrev_b32 v1, 6, v0")
    a("v_and_b32 v0, 63, v0")
    a("v_readfirstlane_b32 s3, v1")
    a("s_and_b32 s%d, s2, 7" % sX)
    a("s_lshr_b32 s%d, s2, 3" % sJ)
    a("s_lshr_b32 s%d, s%d, 2" % (sHL, sJ))
    a("s_and_b32 s%d, s%d, 3" % (sT0, sJ))
    a("s_lshr_b32 s%d, s%d, 1" % (sT1, sX))
    a("s_lshl2_add_u32 s%d, s%d, s%d" % (sI, sT1, sT0))
    a("s_and_b32 s%d, s%d, 1" % (sT2, sX))
    a("s_lshl3_add_u32 s%d, s%d, s%d" % (sH, sT2, sHL))
    a("s_sub_u32 s%d, 2, s%d" % (sT3, sT2))
    a("s_cmp_gt_u32 s%d, s%d" % (sHL, sT3))
    a("s_subb_u32 s%d, s%d, 0" % (sC, sHL))
    a("s_cmp_lg_u32 s%d, s%d" % (sHL, sT3))
    a("s_cselect_b32 s%d, 1, 0" % sHASKV)
    a("s_and_b32 s%d, s3, 3" % sW)
    a("v_lshrrev_b32 v3, 3, v0")
    a("v_lshrrev_b32 v4, 4, v0")
    a("v_and_b32 v5, 7, v0")
    a("v_xor_b32 v6, v5, v4")
    a("v_lshlrev_b32 v6, 4, v6")
    a("v_mul_u32_u24 v2, 896, v3")
    a("v_add_u32 v2, v2, v6")
    a("s_cmp_ge_u32 s3, 4")
    a("s_cbranch_scc1 L_A")


def ws_out_srds(a):
    cfg = a.cfg
    if cfg.wsbase:
        a("s_add_u32 s24, s24, %d" % cfg.wsbase)
        a("s_addc_u32 s25, s25, 0")
    a("s_mov_b32 s26, %d" % WSSZ)
    a("s_mov_b32 s27, 0x20000")
    srd(a, 28, 20, "3670016")


XF = 128
ACC = 96
WB = 64
sXS = 48
sXO, sM0 = 52, 53
sTT, sNF = 54, 55
vXO = 8
vXA = 12
vWA = 16
vL16 = 18
vSYB, vSYA, vMYW = 19, 20, 21
vT = 22


def b_xdma(a, stage):
    slot = stage % 3
    a("s_add_u32 m0, s%d, %d" % (sM0, slot * 16384))
    for j in range(4):
        a.vm("x%d" % stage, "buffer_load_dwordx4 v%d, s[48:51], s%d offen offset:%d%s lds" % (
            vXO + j, sXO, 1024 * j, a.cfg.nt_in))
    a("s_add_u32 s%d, s%d, 128" % (sXO, sXO))


def b_kvloop(a, vtype):
    def reads(n):
        s, ks = divmod(n, 4)
        if ks == 0:
            a.wait(vm="x%d" % s)
            a("s_barrier")
            for q in range(4):
                a.ds("X%d" % s, "ds_read_b128 %s, v%d offset:%d" % (vr(XF + 16 * s + 4 * q, 4), vXA + q, (s % 3) * 16384))
        wb = WB + 8 * (n % 3)
        for ct in range(2):
            for jj in range(2):
                a.ds("W%d" % n, "ds_read_b64_tr_b16 %s, v%d offset:%d" % (
                    vr(wb + 4 * ct + 2 * jj, 2), vWA + ct, s * 8192 + ks * 2048 + jj * 512))

    reads(0)
    reads(1)
    for n in range(28):
        s, ks = divmod(n, 4)
        a.wait(ds="W%d" % n)
        if ks == 0 and s + 3 <= 6:
            b_xdma(a, s + 3)
        wb = WB + 8 * (n % 3)
        xf = vr(XF + 4 * n, 4)
        for ct in range(2):
            acc = vr(ACC + 16 * ct, 16)
            c = acc if n else "0"
            w = vr(wb + 4 * ct, 4)
            if vtype:
                a("v_mfma_f32_32x32x16_bf16 %s, %s, %s, %s" % (acc, xf, w, c))
            else:
                a("v_mfma_f32_32x32x16_bf16 %s, %s, %s, %s" % (acc, w, xf, c))
            if ct == 0 and n + 2 < 28:
                reads(n + 2)


def b_path(a):
    cfg = a.cfg
    a.c("---------------- group B")
    a("v_xor_b32 v%d, 64, v2" % (vXO + 1))
    a("v_mov_b32 v%d, v2" % vXO)
    a("v_add_u32 v%d, 6144, v%d" % (vXO + 1, vXO + 1))
    a("v_add_u32 v%d, 12288, v2" % (vXO + 2))
    a("v_add_u32 v%d, 12288, v%d" % (vXO + 3, vXO + 1))
    a("s_lshl2_add_u32 s%d, s%d, s%d" % (sTT, sI, sW))
    a("s_mul_i32 s%d, s%d, 28672" % (sXO, sTT))
    a("s_lshl_b32 s%d, s%d, 12" % (sM0, sW))
    a("s_add_u32 s%d, s%d, %d" % (sM0, sM0, XR))
    a("s_waitcnt lgkmcnt(0)")
    if cfg.stamps:
        a("s_mov_b32 s84, s100")
    srd(a, sXS, 14, "1835008")
    for s in range(3):
        b_xdma(a, s)
    if cfg.prio:
        a("s_setprio 1")
    ws_out_srds(a)
    a("v_and_b32 v%d, 31, v0" % vT)
    a("v_lshrrev_b32 v%d, 5, v0" % (vT + 1))
    a("v_bfe_u32 v%d, v0, 1, 3" % (vT + 2))
    a("v_xor_b32 v%d, v%d, v%d" % (vT + 2, vT + 2, vT + 1))
    a("v_lshlrev_b32 v%d, 4, v%d" % (vT + 2, vT + 2))
    a("v_lshl_add_u32 v%d, v%d, 7, v%d" % (vT + 2, vT, vT + 2))
    a("v_add_u32 v%d, s%d, v%d" % (vXA, sM0, vT + 2))
    for q in range(1, 4):
        a("v_xor_b32 v%d, %d, v%d" % (vXA + q, 32 * q, vXA))
    a("v_bfe_u32 v%d, v0, 2, 2" % (vT + 3))
    a("v_lshl_add_u32 v%d, v%d, 3, v%d" % (vT + 4, vT + 1, vT + 3))
    a("v_bfe_u32 v%d, v0, 4, 1" % (vT + 5))
    a("v_and_b32 v%d, 1, v0" % (vT + 6))
    a("v_bfe_u32 v%d, v0, 1, 1" % (vT + 7))
    a("v_lshl_add_u32 v%d, v%d, 1, v%d" % (vT + 6, vT + 6, vT + 7))
    a("v_lshl_add_u32 v%d, v%d, 2, v%d" % (vT + 6, vT + 5, vT + 6))
    a("v_and_b32 v%d, 3, v0" % (vT + 7))
    a("v_lshl_add_u32 v%d, v%d, 2, v%d" % (vT + 7, vT + 5, vT + 7))
    a("v_lshlrev_b32 v7, 3, v%d" % (vT + 6))
    a("v_lshl_add_u32 v7, v%d, 6, v7" % (vT + 4))
    a("v_add_u32 v7, %d, v7" % WQ)
    a("s_bitcmp1_b32 s%d, 0" % sX)
    a("s_cselect_b64 vcc, -1, 0")
    a("v_cndmask_b32 v%d, v%d, v%d, vcc" % (vT + 6, vT + 6, vT + 7))
    a("v_lshlrev_b32 v%d, 3, v%d" % (vT + 6, vT + 6))
    a("v_lshl_add_u32 v%d, v%d, 7, v%d" % (vT + 6, vT + 4, vT + 6))
    a("v_bfe_u32 v%d, v0, 3, 1" % (vT + 7))
    a("v_lshlrev_b32 v%d, 6, v%d" % (vT + 7, vT + 7))
    a("v_add_u32 v%d, v%d, v%d" % (vWA, vT + 6, vT + 7))
    a("v_xor_b32 v%d, 64, v%d" % (vWA + 1, vWA))
    a("v_lshlrev_b32 v%d, 4, v0" % vL16)
    a("v_and_b32 v%d, 3, v0" % vSYB)
    a("v_lshlrev_b32 v%d, 2, v%d" % (vSYB, vSYB))
    a("v_add_u32 v%d, %d, v%d" % (vSYA, SY_A, vSYB))
    a("v_add_u32 v%d, %d, v%d" % (vSYB, SY_B, vSYB))
    a("s_lshl2_add_u32 s%d, s%d, %d" % (sT0, sW, SY_B))
    a("v_mov_b32 v%d, s%d" % (vMYW, sT0))
    a("v_mul_u32_u24 v6, 7168, v%d" % (vT + 1))
    a("v_lshl_add_u32 v6, v%d, 4, v6" % vT)
    a("s_mul_i32 s%d, s%d, 28672" % (sT0, sTT))
    a("s_bitcmp1_b32 s%d, 0" % sX)
    a("s_cbranch_scc1 L_B_V")
    snap = a.snap()
    for vtype in (0, 1):
        a.restore(snap)
        if vtype:
            a("L_B_V:")
        b_kvloop(a, vtype)
        a.stamp(1)
        if vtype:
            a("s_lshl_b32 s%d, s%d, 10" % (sT1, sC))
            a("s_add_u32 s%d, s%d, s%d" % (sT0, sT0, sT1))
            a("s_add_u32 s%d, s%d, %d" % (sT0, sT0, VOFF))
            a("s_add_u32 s%d, s%d, 14336" % (sT1, sT0))
        else:
            a("s_lshl_b32 s%d, s%d, 12" % (sT1, sC))
            a("s_add_u32 s%d, s%d, s%d" % (sT0, sT0, sT1))
        a("s_cmp_eq_u32 s%d, 0" % sHASKV)
        a("s_cbranch_scc1 L_B_stored")
        for ct in range(2):
            for f in range(2):
                p = WB + 8 * ct + 4 * f
                for d in range(4):
                    r = ACC + 16 * ct + 8 * f + 2 * d
                    a("v_cvt_pk_bf16_f32 v%d, v%d, v%d" % (p + d, r, r + 1))
                if vtype:
                    a("buffer_store_dwordx4 %s, v6, s[24:27], s%d offen offset:%d sc1" % (
                        vr(p, 4), sT1 if f else sT0, 512 * ct))
                else:
                    a("buffer_store_dwordx4 %s, v%d, s[24:27], s%d offen offset:%d sc1" % (
                        vr(p, 4), vL16, sT0, 2048 * ct + 1024 * f))
        if not vtype:
            a("s_branch L_B_stored")
    a("L_B_stored:")
    a.vq.clear()
    a("v_mov_b32 v%d, 0" % (vT + 8))
    a("global_load_dword v%d, v%d, s[22:23] sc1" % (vT + 9, vT + 8))
    MSK = 56
    masks = [4 + 2 * k for k in range(8)] + [MSK + 2 * k for k in range(8)]
    a("v_lshlrev_b32 v%d, 2, v%d" % (vT + 2, vT + 1))
    a("v_sub_u32 v%d, v%d, v%d" % (vT + 2, vT, vT + 2))
    for k in range(16):
        g, r = divmod(k, 4)
        a("v_cmp_le_i32 %s, %d, v%d" % (sr(masks[k], 2), 8 * g + r, vT + 2))
    PM = 240
    a("v_mov_b32 v%d, 0xffff" % (vT + 3))
    a("v_mov_b32 v%d, 0xffff0000" % (vT + 4))
    for d in range(8):
        a("v_cndmask_b32 v%d, 0, v%d, %s" % (PM + d, vT + 3, sr(masks[2 * d], 2)))
        a("v_cndmask_b32 v%d, 0, v%d, %s" % (vT + 5, vT + 4, sr(masks[2 * d + 1], 2)))
        a("v_or_b32 v%d, v%d, v%d" % (PM + d, PM + d, vT + 5))
    a("s_mul_i32 s%d, s%d, 7" % (sT0, sH))
    a("s_lshr_b32 s72, s%d, 1" % sT0)
    a("s_lshr_b32 s73, s72, 3")
    a("s_add_u32 s74, s72, 3")
    a("s_lshr_b32 s74, s74, 3")
    a("s_lshr_b32 s75, s%d, 4" % sT0)
    a("s_add_u32 s75, s75, 7")
    a("s_add_u32 s76, s%d, 6" % sT0)
    a("s_lshr_b32 s76, s76, 4")
    a("s_add_u32 s76, s76, 7")
    a("s_mul_i32 s77, s%d, 3" % sW)
    a("s_lshr_b32 s78, s77, 2")
    a("s_add_u32 s79, s77, 2")
    a("s_lshr_b32 s79, s79, 2")
    a("s_add_u32 s78, s78, s%d" % sI)
    a("s_add_u32 s79, s79, s%d" % sI)
    vPO = 5
    a("v_mov_b32 v%d, 0" % vPO)
    for l in range(8):
        a("s_mul_i32 s%d, s%d, 14" % (sT1, 78 + (l & 1)))
        a("s_add_u32 s%d, s%d, s%d" % (sT1, sT1, 73 + (l >> 1)))
        a("v_writelane_b32 v%d, s%d, %d" % (vPO, sT1, l))
    a("v_cmp_le_u32 s[80:81], 28, v%d" % vPO)
    a("v_lshlrev_b32 v%d, 7, v%d" % (vPO, vPO))
    a("v_add_u32 v%d, %d, v%d" % (vPO, FOFF + (F_KV - 28) * 128, vPO))
    a("s_min_u32 s%d, s%d, 7" % (sNF, sTT))
    Lg = a.label("go")
    Lgx = a.label("gox")
    a("s_mov_b32 s%d, 0x20000" % sCNT)
    a(Lg + ":")
    a("s_waitcnt vmcnt(0)")
    a("v_cmp_ne_u32 vcc, 0, v%d" % (vT + 9))
    a("s_cbranch_vccnz %s" % Lgx)
    a("global_load_dword v%d, v%d, s[22:23] sc1" % (vT + 9, vT + 8))
    a("s_sub_u32 s%d, s%d, 1" % (sCNT, sCNT))
    a("s_cbranch_scc0 %s" % Lg)
    a(Lgx + ":")
    a.stamp(2)
    a("s_mov_b64 exec, 1")
    a("v_mov_b32 v%d, %d" % (vT + 3, SY_CKV))
    a("v_mov_b32 v%d, 1" % (vT + 4))
    a("ds_add_rtn_u32 v%d, v%d, v%d" % (vT + 5, vT + 3, vT + 4))
    a("s_mul_i32 s%d, s%d, 14" % (sT1, sI))
    a("s_add_u32 s%d, s%d, s%d" % (sT1, sT1, sC))
    a("s_and_b32 s%d, s%d, 1" % (sT2, sX))
    a("s_mul_i32 s%d, s%d, 7" % (sT2, sT2))
    a("s_add_u32 s%d, s%d, s%d" % (sT1, sT1, sT2))
    a("s_lshl_b32 s%d, s%d, 7" % (sT1, sT1))
    a("s_add_u32 s%d, s%d, %d" % (sT1, sT1, FOFF + F_KV * 128))
    a("s_waitcnt lgkmcnt(0)")
    a("v_readfirstlane_b32 s%d, v%d" % (sT2, vT + 5))
    a("s_mul_i32 s%d, s%d, s%d" % (sT2, sT2, sHASKV))
    a("s_cmp_eq_u32 s%d, 3" % sT2)
    a("s_cbranch_scc0 L_B_noflag")
    a("buffer_atomic_add v%d, off, s[24:27], s%d sc1" % (vT + 4, sT1))
    a("L_B_noflag:")
    a("s_mov_b64 exec, -1")
    lds_wait_words(a, vSYA, 1, vT + 3)
    a.stamp(3)
    QB = 64

    def qreads(n):
        for jj in range(2):
            a.ds("Q%d" % n, "ds_read_b64_tr_b16 %s, v7 offset:%d" % (vr(QB + 4 * (n % 6) + 2 * jj, 2), n * 1024 + jj * 256))
    for n in range(5):
        qreads(n)
    for n in range(28):
        a.wait(ds="Q%d" % n)
        a("v_mfma_f32_32x32x16_bf16 %s, %s, %s, %s" % (vr(ACC, 16), vr(QB + 4 * (n % 6), 4), vr(XF + 4 * n, 4),
                                                      vr(ACC, 16) if n else "0"))
        if n + 5 < 28:
            qreads(n + 5)
    a("v_mov_b32 v%d, %d" % (vT + 4, SY_CKV))
    lds_wait_words(a, vT + 4, 4, vT + 3)
    a.stamp(4)
    a("s_and_b64 exec, s[80:81], 0xff")
    a("s_cbranch_execz L_B_polled")
    poll_atomic(a, vPO, 1, vT + 3)
    a("L_B_polled:")
    a("s_mov_b64 exec, -1")
    a.stamp(5)
    a("s_mov_b32 s48, s24")
    a("s_mov_b32 s49, s25")
    a("s_mov_b32 s51, 0x20000")
    a("s_lshl2_add_u32 s78, s%d, s77" % sI)
    a("s_lshl_b32 s73, s72, 9")
    a("s_mul_i32 s74, s%d, 448" % sH)
    a("s_add_u32 s74, s74, %d" % VOFF)
    a("s_lshl_b32 s77, s77, 11")
    a("v_add_u32 v%d, %d, v6" % (vT + 5, 14336 - 1024))
    for kind in range(2):
        if kind:
            a("s_mov_b32 exec_lo, 0x0fffffff")
            a("s_mov_b32 exec_hi, 0x0fffffff")
        for t in range(3):
            a("s_add_u32 s%d, s78, %d" % (sT0, t))
            a("s_sub_u32 s%d, s%d, 8" % (sT0, sT0))
            a("s_cselect_b32 s50, 0, s26")
            a("s_cselect_b32 s%d, 0, s%d" % (sT0, sT0))
            a("s_mul_i32 s%d, s%d, 28672" % (sT0, sT0))
            a("s_add_u32 s%d, s%d, s%d" % (sT0, sT0, 74 if kind else 73))
            a("s_add_u32 m0, s77, %d" % ((VA if kind else KA) + 2048 * t))
            for f in range(2):
                vo = (6 if f == 0 else vT + 5) if kind else vL16
                a.vm("V" if kind else "K", "buffer_load_dwordx4 v%d, s[48:51], s%d offen offset:%d sc1 lds" % (vo, sT0, 1024 * f))
    a("s_mov_b64 exec, 0xfff")
    a("v_lshlrev_b32 v%d, 9, v0" % (vT + 3))
    a("v_add_u32 v%d, s77, v%d" % (vT + 3, vT + 3))
    for d in range(4):
        a("v_mov_b32 v%d, 0x3f803f80" % (28 + d))
    a.ds("ones", "ds_write_b128 v%d, v[28:31] offset:%d" % (vT + 3, VA + 448))
    a("s_mov_b64 exec, -1")
    QF = 248
    a("s_mov_b32 s%d, 0x%08x" % (sT0, f2u(math.log2(math.e) / math.sqrt(28.0))))
    for k in range(16):
        a("v_mul_f32 v%d, s%d, v%d" % (ACC + k, sT0, ACC + k))
    for d in range(8):
        a("v_cvt_pk_bf16_f32 v%d, v%d, v%d" % (QF + d, ACC + 2 * d, ACC + 2 * d + 1))
    a("s_bitcmp1_b32 s%d, 0" % sH)
    a("s_cselect_b32 vcc_lo, 0, -1")
    a("s_mov_b32 vcc_hi, -1")
    a("s_mov_b32 s82, -1")
    a("s_cselect_b32 s83, -1, 0")
    a("v_cndmask_b32 v%d, 0, v%d, vcc" % (QF, QF))
    a("v_cndmask_b32 v%d, 0, v%d, vcc" % (QF + 1, QF + 1))
    a("v_cndmask_b32 v%d, 0, v%d, s[82:83]" % (QF + 6, QF + 6))
    a("v_cndmask_b32 v%d, 0, v%d, s[82:83]" % (QF + 7, QF + 7))
    vKA = 4
    a("s_lshl_b32 s%d, s%d, 11" % (sT0, sW))
    a("v_add_u32 v%d, s%d, v%d" % (vKA, sT0, vL16))
    a.wait(vm="K")
    lds_set_word(a, vMYW, 1, vT + 3)
    lds_wait_words(a, vSYB, 1, vT + 3)
    a.stamp(6)
    KF = 128
    SA, SB, SC = 32, 48, 64
    CI, OA = 80, 96
    VF = 200
    PF = 224
    vM0, vM1 = vT, vT + 2
    order = [8, 0, 7, 6, 5, 4, 3, 2, 1]

    def kread(j):
        for f in range(2):
            a.ds("K%d" % j, "ds_read_b128 %s, v%d offset:%d" % (vr(KF + 8 * j + 4 * f, 4), vKA, KA + 2048 * j + 1024 * f))

    def vread(j, buf):
        for f in range(2):
            a.ds("V%d" % j, "ds_read_b128 %s, v%d offset:%d" % (vr(VF + 8 * buf + 4 * f, 4), vKA, VA + 2048 * j + 1024 * f))

    def qk(j, dst, f, c0):
        a("v_mfma_f32_32x32x16_bf16 %s, %s, %s, %s" % (vr(dst, 16), vr(KF + 8 * j + 4 * f, 4), vr(QF + 4 * f, 4),
                                                      vr(dst, 16) if f else c0))
    for j in order[:7]:
        kread(j)
    a.wait(ds="K8")
    qk(8, SA, 0, "0")
    qk(8, SA, 1, "0")
    kread(order[7])
    a.wait(ds="K0")
    qk(0, SB, 0, "0")
    qk(0, SB, 1, "0")
    kread(order[8])
    a.wait(ds="K7")
    qk(7, SC, 0, "0")
    a("s_cmp_ge_u32 s%d, 8" % sTT)
    qk(7, SC, 1, "0")
    a("s_cbranch_scc1 L_B_merge")
    for k in range(16):
        a("v_mov_b32 v%d, 0xff800000" % (SB + k))
    a("L_B_merge:")
    for k in range(16):
        a("v_cndmask_b32 v%d, v%d, v%d, %s" % (SA + k, SB + k, SA + k, sr(masks[k], 2)))
    a.wait(ds="K6")
    qk(6, SB, 0, "0")
    a("v_max3_f32 v%d, v%d, v%d, v%d" % (vM0, SA, SA + 1, SA + 2))
    a("v_max3_f32 v%d, v%d, v%d, v%d" % (vM1, SA + 3, SA + 4, SA + 5))
    for k in range(6, 14, 4):
        a("v_max3_f32 v%d, v%d, v%d, v%d" % (vM0, vM0, SA + k, SA + k + 1))
        a("v_max3_f32 v%d, v%d, v%d, v%d" % (vM1, vM1, SA + k + 2, SA + k + 3))
    qk(6, SB, 1, "0")
    a("v_max3_f32 v%d, v%d, v%d, v%d" % (vM0, vM0, SA + 14, SA + 15))
    a.wait(ds="*")
    bufs = [SC, SB, CI]
    for n, j in enumerate(range(7, 0, -1)):
        cur = bufs[n % 3]
        a("s_cmp_eq_u32 s%d, %d" % (sNF, n))
        a("s_cbranch_scc1 L_B_p1done")
        for half in range(2):
            if j - 2 >= 1:
                qk(j - 2, bufs[(n + 2) % 3], half, "0")
            for k in range(8 * half, 8 * half + 8, 4):
                a("v_max3_f32 v%d, v%d, v%d, v%d" % (vM0, vM0, cur + k, cur + k + 1))
                a("v_max3_f32 v%d, v%d, v%d, v%d" % (vM1, vM1, cur + k + 2, cur + k + 3))
    a("L_B_p1done:")
    a.wait(vm="*")
    lds_set_word(a, vMYW, 2, vT + 3)
    a("v_max_f32 v%d, v%d, v%d" % (vM0, vM0, vM1))
    a("v_mov_b32 v%d, v%d" % (vM1, vM0))
    a("v_permlane32_swap_b32 v%d, v%d" % (vM0, vM1))
    a("v_max_f32 v%d, v%d, v%d" % (vM0, vM0, vM1))
    lds_wait_words(a, vSYB, 2, vT + 3)
    a.stamp(7)
    vread(8, 0)
    vread(0, 1)
    vread(7, 2)
    for k in range(16):
        a("v_sub_f32 v%d, 0, v%d" % (CI + k, vM0))
    qk(7, SB, 0, vr(CI, 16))
    for k in range(16):
        a("v_sub_f32 v%d, v%d, v%d" % (SA + k, SA + k, vM0))
        if k == 5:
            qk(7, SB, 1, "0")
    for k in range(16):
        a("v_exp_f32 v%d, v%d" % (SA + k, SA + k))
    for d in range(8):
        a("v_cvt_pk_bf16_f32 v%d, v%d, v%d" % (PF + 8 + d, SA + 2 * d, SA + 2 * d + 1))
    for d in range(8):
        a("v_and_b32 v%d, v%d, v%d" % (PF + d, PM + d, PF + 8 + d))
    a.wait(ds="V0")

    def pv(buf, p, f, first=False):
        a("v_mfma_f32_32x32x16_bf16 %s, %s, %s, %s" % (vr(OA, 16), vr(VF + 8 * buf + 4 * f, 4), vr(p + 4 * f, 4),
                                                      "0" if first else vr(OA, 16)))
    pv(0, PF, 0, True)
    for d in range(8):
        a("v_xor_b32 v%d, v%d, v%d" % (PF + 8 + d, PF + d, PF + 8 + d))
    a("s_cmp_lt_u32 s%d, 8" % sTT)
    pv(0, PF, 1)
    a("s_cbranch_scc1 L_B_notail")
    pv(1, PF + 8, 0)
    pv(1, PF + 8, 1)
    a("L_B_notail:")
    sb = [SB, SC]
    for n, j in enumerate(range(7, 0, -1)):
        cur, nxt = sb[n % 2], sb[(n + 1) % 2]
        vb = (2 + n) % 3
        p = PF + 8 * (n % 2)
        a("s_cmp_eq_u32 s%d, %d" % (sNF, n))
        a("s_cbranch_scc1 L_B_p2done")
        if j > 1:
            vread(j - 1, (vb + 1) % 3)
        for k in range(4):
            a("v_exp_f32 v%d, v%d" % (cur + k, cur + k))
        if j > 1:
            qk(j - 1, nxt, 0, vr(CI, 16))
        for k in range(4, 8):
            a("v_exp_f32 v%d, v%d" % (cur + k, cur + k))
        if j > 1:
            qk(j - 1, nxt, 1, "0")
        for k in range(8, 10):
            a("v_exp_f32 v%d, v%d" % (cur + k, cur + k))
        for d in range(4):
            a("v_cvt_pk_bf16_f32 v%d, v%d, v%d" % (p + d, cur + 2 * d, cur + 2 * d + 1))
        for k in range(10, 12):
            a("v_exp_f32 v%d, v%d" % (cur + k, cur + k))
        a.wait(ds="V%d" % j)
        pv(vb, p, 0)
        for k in range(12, 16):
            a("v_exp_f32 v%d, v%d" % (cur + k, cur + k))
        for d in range(4, 8):
            a("v_cvt_pk_bf16_f32 v%d, v%d, v%d" % (p + d, cur + 2 * d, cur + 2 * d + 1))
        pv(vb, p, 1)
    a("L_B_p2done:")
    a.wait(ds="*")
    a("s_lshl_b32 s%d, s%d, 15" % (sT0, sTT))
    a("s_lshl_b32 s%d, s%d, 11" % (sT1, sH))
    a("s_add_u32 s%d, s%d, s%d" % (sT0, sT0, sT1))
    a("s_add_u32 s%d, s%d, %d" % (sT0, sT0, OOFF))
    a("s_lshr_b32 s%d, s%d, 2" % (sT1, sH))
    a("s_lshl2_add_u32 s%d, s%d, s%d" % (sT1, sTT, sT1))
    a("s_lshl_b32 s%d, s%d, 7" % (sT1, sT1))
    a("s_add_u32 s%d, s%d, %d" % (sT1, sT1, FOFF + F_O * 128))
    a("s_mov_b32 vcc_lo, -1")
    a("s_mov_b32 vcc_hi, 0")
    a("v_mov_b32 v%d, v%d" % (vM0, OA + 12))
    a("v_mov_b32 v%d, v%d" % (vM1, OA + 12))
    a("v_permlane32_swap_b32 v%d, v%d" % (vM0, vM1))
    a("v_rcp_f32 v%d, v%d" % (vM1, vM1))
    for f in range(2):
        for k in range(8 * f, 8 * f + 8):
            a("v_mul_f32 v%d, v%d, v%d" % (OA + k, vM1, OA + k))
        for d in range(4 * f, 4 * f + 4):
            a("v_cvt_pk_bf16_f32 v%d, v%d, v%d" % (PF + d, OA + 2 * d, OA + 2 * d + 1))
        if f:
            a("v_cndmask_b32 v%d, 0, v%d, vcc" % (PF + 6, PF + 6))
            a("v_cndmask_b32 v%d, 0, v%d, vcc" % (PF + 7, PF + 7))
        a("buffer_store_dwordx4 %s, v%d, s[24:27], s%d offen offset:%d sc1" % (vr(PF + 4 * f, 4), vL16, sT0, 1024 * f))
    a.stamp(8)
    sU, sET, sRT0, sMIR, sSP = 72, 73, 74, 75, 76
    a("s_cmp_ge_u32 s%d, 14" % sJ)
    a("s_cselect_b32 s%d, 14, 0" % sT2)
    a("s_addc_u32 s%d, s%d, s%d" % (sU, sX, sX))
    a("s_sub_u32 s%d, s%d, s%d" % (sET, sJ, sT2))
    a("s_cmp_eq_u32 s%d, 0" % sU)
    a("s_cselect_b32 s%d, 3, 2" % sT2)
    a("s_cselect_b32 s%d, 1, 0" % sSP)
    a("s_cmp_ge_u32 s%d, 28" % sJ)
    a("s_cselect_b32 s%d, 0, s%d" % (sT2, sT2))
    a("s_lshl_b32 s%d, s%d, 10" % (sRT0, sW))
    a("s_add_u32 s%d, s%d, s%d" % (sRT0, sRT0, sU))
    a("s_cmp_eq_u32 s%d, 2" % sW)
    a("s_cselect_b32 s%d, 16, s%d" % (sRT0, sRT0))
    a("s_cselect_b32 s%d, 2, s%d" % (sSP, sSP))
    a("v_mov_b32 v%d, 1" % (vT + 4))
    a("s_waitcnt vmcnt(0)")
    a("s_mov_b64 exec, 1")
    a("buffer_atomic_add v%d, off, s[24:27], s%d sc1" % (vT + 4, sT1))
    a("s_mov_b64 exec, -1")
    a.stamp(9)
    a("s_cmp_ge_u32 s%d, s%d" % (sW, sT2))
    a("s_cbranch_scc1 L_B_done")
    a("v_lshlrev_b32 v%d, 7, v0" % vPO)
    a("v_add_u32 v%d, %d, v%d" % (vPO, FOFF + F_G * 128, vPO))
    a("s_mov_b64 exec, 0x7f")
    poll_atomic(a, vPO, 32, vT + 3)
    a("s_mov_b64 exec, -1")
    a.stamp(10)
    GA, GB, M1, M2, PA, QA = 32, 64, 128, 160, 96, 112
    vE, vHH, vCA, vCB, vTAU, vRA, vRB = 8, 9, 10, 11, 12, 13, 14
    a("v_and_b32 v%d, 31, v0" % vT)
    a("v_lshrrev_b32 v%d, 5, v0" % vHH)
    a("s_lshl_b32 s%d, s%d, 5" % (sT0, sET))
    a("v_add_u32 v%d, s%d, v%d" % (vE, sT0, vT))
    a("v_sub_u32 v%d, 448, v%d" % (vT + 2, vE))
    a("v_min_u32 v%d, v%d, v%d" % (vCA, vE, vT + 2))
    a("v_max_u32 v%d, v%d, v%d" % (vCB, vE, vT + 2))
    a("v_mul_u32_u24 v%d, 7168, v%d" % (vT + 3, vHH))
    a("v_cmp_eq_u32 vcc, 0, v%d" % vCA)
    a("v_cmp_eq_u32 s[82:83], v%d, v%d" % (vCA, vCB))
    a("v_lshl_add_u32 v%d, v%d, 3, v%d" % (vCA, vCA, vT + 3))
    a("v_lshl_add_u32 v%d, v%d, 3, v%d" % (vCB, vCB, vT + 3))
    a("s_or_b64 vcc, vcc, s[82:83]")
    a("v_mov_b32 v%d, 0x%x" % (vT + 4, OOB))
    a("v_cndmask_b32 v%d, v%d, v%d, vcc" % (vCB, vCB, vT + 4))
    a("s_mul_i32 s%d, s%d, 114688" % (sT1, sU))
    a("s_add_u32 s%d, s%d, %d" % (sT1, sT1, GOFF))
    for ks in range(8):
        for (dst, vo) in ((GA, vCA), (GB, vCB)):
            for pp in range(2):
                a.vm("G%d" % ks, "buffer_load_dwordx2 %s, v%d, s[24:27], s%d offen offset:%d sc1" % (
                    vr(dst + 4 * ks + 2 * pp, 2), vo, sT1, 3584 * pp))
        if ks < 7:
            a("s_add_u32 s%d, s%d, 14336" % (sT1, sT1))
    a("v_lshl_add_u32 v%d, v%d, 5, s%d" % (vT + 2, vT, sRT0))
    a("v_cvt_f32_u32 v%d, v%d" % (vTAU, vT + 2))
    a("v_mul_f32 v%d, 0x%08x, v%d" % (vTAU, f2u(1 / 2048.0), vTAU))
    a("v_sub_u32 v%d, 2048, v%d" % (vT + 3, vT + 2))
    a("v_mul_u32_u24 v%d, 1792, v%d" % (vT + 2, vT + 2))
    a("v_mul_u32_u24 v%d, 1792, v%d" % (vT + 3, vT + 3))
    a("s_cmp_eq_u32 s%d, 1" % sSP)
    a("s_cselect_b64 vcc, -1, 0")
    a("v_cndmask_b32 v%d, v%d, v%d, vcc" % (vT + 3, vT + 3, vT + 4))
    a("s_cmp_ge_u32 s%d, 7" % sET)
    a("s_cselect_b64 vcc, -1, 0")
    a("v_cndmask_b32 v%d, v%d, v%d, vcc" % (vRA, vT + 2, vT + 3))
    a("v_cndmask_b32 v%d, v%d, v%d, vcc" % (vRB, vT + 3, vT + 2))
    a("v_lshl_add_u32 v%d, v%d, 4, v%d" % (vRA, vHH, vRA))
    a("v_lshl_add_u32 v%d, v%d, 4, v%d" % (vRB, vHH, vRB))
    a("s_lshl_b32 s%d, s%d, 6" % (sT0, sET))
    a("v_lshlrev_b32 v%d, 2, v%d" % (vT + 2, vHH))
    a("v_cvt_f32_u32 v%d, v%d" % (vT + 2, vT + 2))
    a("v_mul_f32 v%d, v%d, v%d" % (vT + 2, vT + 2, vTAU))
    a("v_mul_f32 v%d, 0x%08x, v%d" % (vT + 3, f2u(5.0), vTAU))
    for n in range(32):
        c, s = vT + 4 + 2 * (n % 2), vT + 5 + 2 * (n % 2)
        a("v_cos_f32 v%d, v%d" % (c, vT + 2))
        a("v_sin_f32 v%d, v%d" % (s, vT + 2))
        if n < 31:
            a("v_add_f32 v%d, v%d, v%d" % (vT + 2, vT + 2, vT + 3 if n % 4 == 3 else vTAU))
        a("v_cvt_pk_bf16_f32 v%d, v%d, -v%d" % (M1 + n, c, s))
        a("v_cvt_pk_bf16_f32 v%d, v%d, v%d" % (M2 + n, s, c))
    a("s_cmp_eq_u32 s%d, 0" % sSP)
    a("s_cbranch_scc1 L_B_mok")
    a("s_cmp_eq_u32 s%d, 1" % sSP)
    a("s_cselect_b32 s%d, 0, 16" % sT1)
    for n in range(64):
        a("v_and_b32 v%d, 0xffff, v%d" % (M1 + n, M1 + n))
        a("v_lshlrev_b32 v%d, s%d, v%d" % (M1 + n, sT1, M1 + n))
    a("L_B_mok:")
    for ks in range(8):
        a.wait(vm="G%d" % ks)
        a("v_mfma_f32_32x32x16_bf16 %s, %s, %s, %s" % (vr(PA, 16), vr(GA + 4 * ks, 4), vr(M1 + 4 * ks, 4), vr(PA, 16) if ks else "0"))
        a("v_mfma_f32_32x32x16_bf16 %s, %s, %s, %s" % (vr(QA, 16), vr(GB + 4 * ks, 4), vr(M2 + 4 * ks, 4), vr(QA, 16) if ks else "0"))
    for sign, vrow, T, P in ((0, vRA, 192, 224), (1, vRB, 208, 232)):
        for k in range(16):
            a("%s v%d, v%d, v%d" % ("v_add_f32" if sign else "v_sub_f32", T + k, PA + k, QA + k))
        for d in range(8):
            a("v_cvt_pk_bf16_f32 v%d, v%d, v%d" % (P + d, T + 2 * d, T + 2 * d + 1))
        for f in range(2):
            a("v_permlane32_swap_b32 v%d, v%d" % (P + 4 * f, P + 4 * f + 2))
            a("v_permlane32_swap_b32 v%d, v%d" % (P + 4 * f + 1, P + 4 * f + 3))
        for f in range(2):
            a("buffer_store_dwordx4 %s, v%d, s[28:31], s%d offen offset:%d%s" % (vr(P + 4 * f, 4), vrow, sT0, 32 * f, cfg.out_pol))
    a("L_B_done:")
    if cfg.stamps:
        a("s_waitcnt vmcnt(0)")
    a.stamp(11)
    a.stamp_flush()
    a("s_endpgm")


def a_path(a):
    cfg = a.cfg
    a.vq.clear()
    a.dq.clear()
    a("L_A:")
    a.c("---------------- group A")
    sWS = 48
    sXA = 52
    sRS = 56
    sWO = 60
    sO0, sO1, sM = 64, 65, 66
    sRG, sCN, sHASA, sTTo, sCP = 67, 68, 69, 70, 71
    vW0, vW1, vWQ = 8, 9, 10
    a("v_lshlrev_b32 v7, 2, v4")
    a("v_and_b32 v7, 4, v7")
    a("v_xor_b32 v7, v7, v5")
    a("v_lshlrev_b32 v7, 4, v7")
    a("v_mul_u32_u24 v%d, 2688, v3" % vW0)
    a("v_add_u32 v%d, v%d, v7" % (vW0, vW0))
    a("v_add_u32 v%d, %d, v%d" % (vW1, 8 * 2688 - 1024, vW0))
    a("s_mul_i32 s%d, s%d, 7" % (sT2, sT2))
    a("s_add_u32 s%d, s%d, s%d" % (sT2, sT2, sC))
    a("s_lshl_b32 s%d, s%d, 7" % (sT2, sT2))
    a("s_mul_i32 s%d, s%d, %d" % (sO0, sW, 16 * 2688))
    a("s_add_u32 s%d, s%d, s%d" % (sO0, sO0, sT2))
    a("s_add_u32 s%d, s%d, 896" % (sO0, sO0))
    a("s_lshl_b32 s%d, s%d, 11" % (sM, sW))
    a("s_mul_i32 s50, s%d, 1204224" % sHASKV)
    a("s_mov_b32 s51, 0x20000")
    a("s_waitcnt lgkmcnt(0)")
    if cfg.stamps:
        a("s_mov_b32 s84, s100")
    a("s_mov_b32 s48, s16")
    a("s_mov_b32 s49, s17")
    for s in range(7):
        a("s_add_u32 m0, s%d, %d" % (sM, WKV + 8192 * s))
        a.vm("w%d" % s, "buffer_load_dwordx4 v%d, s[48:51], s%d offen%s lds" % (vW0, sO0, cfg.nt_in))
        a.vm("w%d" % s, "buffer_load_dwordx4 v%d, s[48:51], s%d offen offset:1024%s lds" % (vW1, sO0, cfg.nt_in))
        if s < 6:
            a("s_add_u32 s%d, s%d, %d" % (sO0, sO0, 64 * 2688))
        if s == 0:
            a("s_lshl2_add_u32 s%d, s%d, s%d" % (sT0, sJ, sW))
            a("s_lshl_b32 s%d, s%d, 8" % (sT0, sT0))
            a("v_lshl_add_u32 v11, v0, 7, s%d" % sT0)
            a("v_min_u32 v11, L_end-%s_kernel-64, v11" % NAME)
            a("s_mov_b64 exec, 3")
            a.vm("pf", "global_load_dword v127, v11, s[46:47]")
            a("s_mov_b64 exec, -1")
            a("v_lshl_add_u32 v13, v0, 2, 0")
            a("v_add_u32 v13, %d, v13" % SY)
            a("v_mov_b32 v14, 0")
            a("ds_write_b32 v13, v14")
    ws_out_srds(a)
    a("s_mov_b32 s50, 1204224")
    a("s_cmp_lg_u32 s2, 64")
    a("s_cbranch_scc1 L_A_noclear")
    a("s_cmp_lg_u32 s3, 4")
    a("s_cbranch_scc1 L_A_noclear")
    a("v_lshlrev_b32 v15, 7, v0")
    a("v_mov_b32 v16, 1")
    for k in range(8):
        a("s_mov_b32 s%d, %d" % (sT0, FOFF + 8192 * k))
        a("buffer_store_dword v14, v15, s[24:27], s%d offen sc1" % sT0)
    a("s_waitcnt vmcnt(0)")
    a("global_store_dword v14, v16, s[22:23] sc1")
    a("s_waitcnt vmcnt(0)")
    a("L_A_noclear:")
    a("s_and_b32 s%d, s%d, 3" % (sT0, sJ))
    a("s_lshl2_add_u32 s%d, s%d, s%d" % (sRG, sX, sT0))
    a("s_and_b32 s%d, s%d, 1" % (sT0, sX))
    a("s_sub_u32 s%d, 4, s%d" % (sT0, sT0))
    a("s_cmp_gt_u32 s%d, s%d" % (sHL, sT0))
    a("s_subb_u32 s%d, s%d, 0" % (sCN, sHL))
    a("s_cmp_lg_u32 s%d, s%d" % (sHL, sT0))
    a("s_cselect_b32 s%d, 1, 0" % sHASA)
    a("s_and_b32 s%d, s%d, 7" % (sT0, sJ))
    a("s_lshl3_add_u32 s%d, s%d, s%d" % (sTTo, sX, sT0))
    a("s_lshr_b32 s%d, s%d, 3" % (sCP, sJ))
    srd(a, sXA, 4, "1835008")
    srd(a, sWO, 18, "401408")
    a("s_lshl2_add_u32 s%d, s%d, s%d" % (sT0, sCN, sW))
    a("s_cmp_lt_u32 s%d, 14" % sT0)
    a("s_cselect_b32 s56, s10, s12")
    a("s_cselect_b32 s57, s11, s13")
    a("s_mov_b32 s58, 401408")
    a("s_mov_b32 s59, 0x20000")
    a("s_cmp_eq_u32 s%d, 14" % sT0)
    a("s_cselect_b32 s72, 0x00010001, 0")
    a("s_mov_b32 s73, s72")
    a("s_mul_i32 s75, s%d, %d" % (sT0, 16 * 896))
    a("s_and_b32 s%d, s%d, 1" % (sT1, sW))
    a("s_lshl_b32 s%d, s%d, 10" % (sT1, sT1))
    a("s_lshr_b32 s%d, s%d, 1" % (sT2, sW))
    a("s_add_u32 s%d, s%d, s%d" % (sT1, sT1, sT2))
    a("s_lshl1_add_u32 s%d, s%d, s%d" % (sT1, sRG, sT1))
    a("s_mul_i32 s74, s%d, 896" % sT1)
    a("v_lshrrev_b32 v11, 2, v0")
    a("v_and_b32 v12, 3, v0")
    a("v_mul_u32_u24 v%d, 2688, v11" % vWQ)
    a("v_lshl_add_u32 v%d, v12, 4, v%d" % (vWQ, vWQ))
    a("s_mul_i32 s%d, s%d, 7" % (sT1, sH))
    a("s_lshr_b32 s%d, s%d, 1" % (sT1, sT1))
    a("s_lshl_b32 s%d, s%d, 4" % (sT1, sT1))
    a("s_mul_i32 s%d, s%d, %d" % (sO1, sW, 16 * 2688))
    a("s_add_u32 s%d, s%d, s%d" % (sO1, sO1, sT1))
    a("s_lshl_b32 s76, s%d, 10" % sW)
    vSB, vSA, vMY = 19, 20, 21
    a("v_lshlrev_b32 v%d, 2, v12" % vSB)
    a("v_add_u32 v%d, %d, v%d" % (vSA, SY_A, vSB))
    a("v_add_u32 v%d, %d, v%d" % (vSB, SY_B, vSB))
    a("s_lshl2_add_u32 s%d, s%d, %d" % (sT0, sW, SY_A))
    a("v_mov_b32 v%d, s%d" % (vMY, sT0))
    vXA0, vXA1, vR0, vR1, vFX, vFR = 22, 23, 24, 25, 26, 28
    a("v_mul_u32_u24 v%d, %d, v3" % (vXA0, 64 * 896))
    a("v_add_u32 v%d, v%d, v6" % (vXA0, vXA0))
    a("v_xor_b32 v%d, 64, v%d" % (vXA1, vXA0))
    a("v_add_u32 v%d, %d, v%d" % (vXA1, 8 * 64 * 896 - 1024, vXA1))
    a("v_mov_b32 v%d, v2" % vR0)
    a("v_xor_b32 v%d, 64, v2" % vR1)
    a("v_add_u32 v%d, 6144, v%d" % (vR1, vR1))
    a("v_and_b32 v13, 15, v0")
    a("v_bfe_u32 v15, v0, 1, 3")
    a("v_xor_b32 v15, v15, v4")
    a("v_lshlrev_b32 v15, 4, v15")
    a("v_lshl_add_u32 v15, v13, 7, v15")
    a("v_add_u32 v%d, %d, v15" % (vFX, AR))
    a("v_xor_b32 v%d, 64, v%d" % (vFX + 1, vFX))
    a("s_add_u32 s%d, s%d, 8192" % (sT0, sM))
    a("v_add_u32 v%d, s%d, v%d" % (vFR, sT0, vFX))
    a("v_add_u32 v%d, s%d, v%d" % (vFR + 1, sT0, vFX + 1))
    HF = 40
    a("v_lshlrev_b32 v16, 2, v4")
    a("v_cvt_f32_u32 v16, v16")
    a("v_and_b32 v17, 1, v0")
    a("v_cvt_f32_u32 v17, v17")
    a("v_mul_f32 v17, 0x%08x, v17" % f2u(-0.25))
    a("v_cmp_eq_u32 vcc, 1, v13")
    for f in range(2):
        a("v_lshrrev_b32 v18, 1, v13")
        if f:
            a("v_add_u32 v18, 8, v18")
            a("v_mov_b32 v30, v17")
        else:
            a("v_cndmask_b32 v18, v18, 16, vcc")
            a("v_cndmask_b32 v30, v17, 0, vcc")
        a("v_cvt_f32_u32 v18, v18")
        a("v_mul_f32 v18, 0x%08x, v18" % f2u(1 / 32.0))
        a("v_fma_f32 v30, v16, v18, v30")
        a("v_mul_f32 v31, 0x%08x, v18" % f2u(13.0))
        for j in range(8):
            a("v_cos_f32 v%d, v30" % (32 + j))
            if j < 7:
                a("v_add_f32 v30, v30, v%d" % (31 if j == 3 else 18))
        for d in range(4):
            a("v_cvt_pk_bf16_f32 v%d, v%d, v%d" % (HF + 4 * f + d, 32 + 2 * d, 33 + 2 * d))
    a("s_waitcnt lgkmcnt(0)")

    def wq(n):
        a("s_add_u32 m0, s76, %d" % (WQ + 4096 * n))
        a.vm("wq", "buffer_load_dwordx4 v%d, s[48:51], s%d offen%s lds" % (vWQ, sO1, cfg.nt_in))
        a("s_add_u32 s%d, s%d, %d" % (sO1, sO1, 64 * 2688))

    def a1dma(s):
        slot = AR + (s % 3) * 16384
        a("s_add_u32 m0, s%d, %d" % (sM, slot))
        a.vm("a%d" % s, "buffer_load_dwordx4 v%d, s[52:55], s74 offen%s lds" % (vXA0, cfg.nt_in))
        a.vm("a%d" % s, "buffer_load_dwordx4 v%d, s[52:55], s74 offen offset:1024%s lds" % (vXA1, cfg.nt_in))
        a("s_add_u32 m0, s%d, %d" % (sM, slot + 8192))
        a("s_add_u32 s74, s74, 128")
        a.vm("a%d" % s, "buffer_load_dwordx4 v%d, s[56:59], s75 offen%s lds" % (vR0, cfg.nt_in))
        a.vm("a%d" % s, "buffer_load_dwordx4 v%d, s[56:59], s75 offen offset:1024%s lds" % (vR1, cfg.nt_in))
        a("s_add_u32 s75, s75, 128")

    for s in range(7):
        a.wait(vm="w%d" % s)
        a("s_barrier")
        if s == 5:
            for n in range(4):
                wq(n)
        if s == 6:
            for n in range(4, 7):
                wq(n)
    a.stamp(1)
    a("s_cmp_eq_u32 s%d, 0" % sHASA)
    a("s_cbranch_scc0 L_A_a1")
    a("s_waitcnt vmcnt(0)")
    a("v_mov_b32 v30, 9")
    a("ds_write_b32 v%d, v30" % vMY)
    a("s_branch L_A_wo")
    a("L_A_a1:")
    for s in range(3):
        a1dma(s)
    a.wait(vm="wq")
    lds_set_word(a, vMY, 1, 30)
    a.stamp(2)
    AC, FX, FR = 48, 64, 96
    a("v_mov_b32 v31, 0xbf803f80")
    for s in range(7):
        slot = (s % 3) * 16384
        a.wait(vm="a%d" % s, ds="*")
        lds_set_word(a, vMY, 2 + s, 30)
        lds_wait_words(a, vSA, 2 + s, 30)
        for kk in range(2):
            a.ds("r%d" % kk, "ds_read_b128 %s, v%d offset:%d" % (vr(FR + 4 * kk, 4), vFR + kk, slot))
            for mt in range(4):
                a.ds("f%d_%d" % (kk, mt), "ds_read_b128 %s, v%d offset:%d" % (vr(FX + 16 * kk + 4 * mt, 4), vFX + kk, slot + 2048 * mt))
        if 1 <= s and s + 2 <= 6:
            a1dma(s + 2)
        for kk in range(2):
            a.wait(ds="r%d" % kk)
            for d in range(4):
                a("v_cndmask_b32 v%d, v%d, v31, s[72:73]" % (FR + 4 * kk + d, FR + 4 * kk + d))
            for mt in range(4):
                a.wait(ds="f%d_%d" % (kk, mt))
                acc = vr(AC + 4 * mt, 4)
                a("v_mfma_f32_16x16x32_bf16 %s, %s, %s, %s" % (acc, vr(FX + 16 * kk + 4 * mt, 4), vr(FR + 4 * kk, 4),
                                                              acc if (s or kk) else "0"))
    lds_set_word(a, vMY, 9, 30)
    a.stamp(3)
    a("s_lshl2_add_u32 s%d, s%d, s%d" % (sT0, sCN, sW))
    a("s_lshl_b32 s%d, s%d, 7" % (sT0, sT0))
    a("s_mul_i32 s%d, s%d, 3584" % (sT1, sRG))
    a("s_add_u32 s%d, s%d, s%d" % (sT0, sT0, sT1))
    a("s_add_u32 s%d, s%d, %d" % (sT0, sT0, GOFF))
    a("v_mul_u32_u24 v14, %d, v4" % (2 * 114688))
    a("v_lshl_add_u32 v14, v13, 3, v14")
    for d in range(8):
        a("v_cvt_pk_bf16_f32 v%d, v%d, v%d" % (FX + d, AC + 2 * d, AC + 2 * d + 1))
    D2 = 80
    for f in range(2):
        for u in range(2):
            a("v_mfma_f32_16x16x32_bf16 %s, %s, %s, 0" % (vr(D2 + 8 * f + 4 * u, 4), vr(HF + 4 * f, 4), vr(FX + 4 * u, 4)))
    for f in range(2):
        for rr in range(2):
            p = 72 + 4 * f + 2 * rr
            for u in range(2):
                r = D2 + 8 * f + 4 * u + 2 * rr
                a("v_cvt_pk_bf16_f32 v%d, v%d, v%d" % (p + u, r, r + 1))
            a("s_add_u32 s%d, s%d, %d" % (sT1, sT0, (8 * f + rr) * 114688))
            a("buffer_store_dwordx2 %s, v14, s[24:27], s%d offen sc1" % (vr(p, 2), sT1))
    a("v_mov_b32 v15, %d" % SY_CKV)
    lds_wait_words(a, 15, 1, 30)
    a("s_waitcnt vmcnt(0)")
    a.vq.clear()
    a("s_mov_b64 exec, 1")
    a("v_mov_b32 v15, %d" % SY_CG)
    a("v_mov_b32 v16, 1")
    a("ds_add_rtn_u32 v17, v15, v16")
    a("s_lshl_b32 s%d, s%d, 7" % (sT1, sCN))
    a("s_add_u32 s%d, s%d, %d" % (sT1, sT1, FOFF + F_G * 128))
    a("s_waitcnt lgkmcnt(0)")
    a("v_readfirstlane_b32 s%d, v17" % sT2)
    a("s_cmp_eq_u32 s%d, 3" % sT2)
    a("s_cbranch_scc0 L_A_noflag")
    a("buffer_atomic_add v16, off, s[24:27], s%d sc1" % sT1)
    a("s_waitcnt vmcnt(0)")
    a("L_A_noflag:")
    a("s_mov_b64 exec, -1")
    a("L_A_wo:")
    a.stamp(4)
    vWo, vWr, vL = 8, 12, 18
    a("v_bfe_u32 v14, v0, 2, 2")
    a("v_xor_b32 v15, v14, v4")
    a("v_and_b32 v16, 3, v0")
    a("v_lshlrev_b32 v17, 4, v16")
    a("v_lshl_add_u32 v17, v15, 6, v17")
    a("v_mul_u32_u24 v30, 896, v4")
    a("v_add_u32 v17, v17, v30")
    a("s_cmp_eq_u32 s%d, 3" % sCP)
    a("s_cselect_b32 s%d, 2, 4" % sT0)
    a("v_cmp_gt_u32 vcc, s%d, v15" % sT0)
    a("v_mov_b32 v30, 0x%x" % OOB)
    a("v_cndmask_b32 v%d, v30, v17, vcc" % vWo)
    a("v_add_u32 v%d, 2560, v%d" % (vWo + 1, vWo))
    a("s_cmp_eq_u32 s%d, 3" % sW)
    a("s_cselect_b32 s%d, 0x%x, 5120" % (sT1, OOB) if False else "s_cselect_b32 s%d, 0x%x, 0" % (sT1, OOB))
    a("s_add_u32 s%d, s%d, 5120" % (sT1, sT1))
    a("v_add_u32 v%d, s%d, v%d" % (vWo + 2, sT1, vWo))
    a("v_add_u32 v%d, s%d, v%d" % (vWo + 3, sT1, vWo + 1))
    a("s_mul_i32 s%d, s%d, %d" % (sO0, sW, 16 * 896))
    a("s_lshl_b32 s%d, s%d, 8" % (sT1, sCP))
    a("s_add_u32 s%d, s%d, s%d" % (sO0, sO0, sT1))
    a("s_lshl_b32 s%d, s%d, 12" % (sM, sW))
    a("v_lshrrev_b32 v31, 5, v0")
    a("v_lshl_add_u32 v30, v31, 2, v14")
    a("v_lshlrev_b32 v30, 8, v30")
    a("v_xor_b32 v14, s%d, v14" % sW)
    a("v_lshl_add_u32 v30, v14, 6, v30")
    a("v_and_b32 v14, 1, v0")
    a("v_lshl_add_u32 v30, v14, 5, v30")
    a("v_bfe_u32 v14, v0, 1, 1")
    a("v_lshl_add_u32 v30, v14, 3, v30")
    a("v_bfe_u32 v14, v0, 4, 1")
    a("v_lshl_add_u32 v30, v14, 4, v30")
    a("v_add_u32 v%d, %d, v30" % (vWr, AR))
    a("v_lshlrev_b32 v%d, 4, v0" % vL)
    a("v_and_b32 v14, 31, v0")
    a("v_mul_u32_u24 v13, 1792, v14")
    a("v_lshl_add_u32 v13, v31, 5, v13")
    lds_wait_words(a, vSA, 9, 30)
    lds_wait_words(a, vSB, 2, 30)
    a.stamp(5)

    def wodma(s):
        a("s_add_u32 m0, s%d, %d" % (sM, AR + (s % 3) * 16384))
        for qq in range(4):
            a.vm("o%d" % s, "buffer_load_dwordx4 v%d, s[60:63], s%d offen offset:%d%s lds" % (vWo + qq, sO0, 1024 * qq, cfg.nt_in))
        a("s_add_u32 s%d, s%d, %d" % (sO0, sO0, 56 * 896))
    WF = 128
    for s in range(3):
        wodma(s)
    for s in range(8):
        slot = (s % 3) * 16384
        a.wait(vm="o%d" % s, ds="*")
        lds_set_word(a, vMY, 10 + s, 30)
        lds_wait_words(a, vSA, 10 + s, 30)
        for hd in range(2):
            for f in range(2):
                for jj in range(2):
                    a.ds("wo", "ds_read_b64_tr_b16 %s, v%d offset:%d" % (
                        vr(WF + 16 * s + 8 * hd + 4 * f + 2 * jj, 2), vWr, slot + (28 * hd + 16 * f + 8 * jj) * 256))
        if 1 <= s and s + 2 <= 7:
            wodma(s + 2)
    a.wait(ds="*")
    lds_set_word(a, vMY, 18, 30)
    a("s_lshl2_add_u32 s%d, s%d, s%d" % (sT0, sTTo, sW))
    a("s_lshl_b32 s%d, s%d, 7" % (sT1, sT0))
    a("s_add_u32 s%d, s%d, %d" % (sT1, sT1, FOFF + F_O * 128))
    a("v_mov_b32 v15, s%d" % sT1)
    a("s_lshl_b32 s%d, s%d, 13" % (sT0, sT0))
    a("s_add_u32 s%d, s%d, %d" % (sO0, sT0, OOFF))
    a("s_add_u32 s%d, s%d, 4096" % (sO1, sO0))
    a("s_lshl_b32 s%d, s%d, 13" % (sM, sW))
    lds_wait_words(a, vSA, 18, 30)
    a.stamp(6)
    a("s_mov_b64 exec, 1")
    poll_atomic(a, 15, 4, 30)
    a("s_mov_b64 exec, -1")
    a.stamp(7)
    for hf in range(2):
        a("s_add_u32 m0, s%d, %d" % (sM, AR + 4096 * hf))
        for qq in range(4):
            a("buffer_load_dwordx4 v%d, s[24:27], s%d offen offset:%d sc1 lds" % (vL, sO1 if hf else sO0, 1024 * qq))
    a("v_add_u32 v%d, %d, v%d" % (vL, AR, vL))
    a("s_mul_i32 s%d, s%d, %d" % (sT0, sTTo, 32 * 1792))
    a("s_lshl2_add_u32 s%d, s%d, s%d" % (sT1, sCP, sW))
    a("s_lshl_b32 s%d, s%d, 6" % (sT2, sT1))
    a("s_add_u32 s%d, s%d, s%d" % (sT0, sT0, sT2))
    a("s_add_u32 s%d, s%d, 896" % (sT0, sT0))
    a("s_waitcnt vmcnt(0)")
    lds_set_word(a, vMY, 19, 30)
    a("s_cmp_ge_u32 s%d, 14" % sT1)
    a("s_cbranch_scc1 L_A_done")
    lds_wait_words(a, vSA, 19, 30)
    a.stamp(8)
    OB, OC = 64, 48

    def oread(n):
        a.ds("of%d" % n, "ds_read_b128 %s, v%d offset:%d" % (vr(OB + 4 * (n % 8), 4), vL, 1024 * n))
    for n in range(6):
        oread(n)
    for n in range(32):
        a.wait(ds="of%d" % n)
        a("v_mfma_f32_32x32x16_bf16 %s, %s, %s, %s" % (vr(OC, 16), vr(WF + 4 * n, 4), vr(OB + 4 * (n % 8), 4),
                                                      vr(OC, 16) if n else "0"))
        if n + 6 < 32:
            oread(n + 6)
    for f in range(2):
        for d in range(4):
            a("v_cvt_pk_bf16_f32 v%d, v%d, v%d" % (32 + 4 * f + d, OC + 8 * f + 2 * d, OC + 8 * f + 2 * d + 1))
        a("buffer_store_dwordx4 %s, v13, s[28:31], s%d offen offset:%d%s" % (vr(32 + 4 * f, 4), sT0, 16 * f, cfg.out_pol))
    a.stamp(9)
    a("L_A_done:")
    if cfg.stamps:
        a("s_waitcnt vmcnt(0)")
    a.stamp(11)
    a.stamp_flush()
    a("L_end:")
    a("s_endpgm")


HEAD = """; Fused FNet (two-stage DFT factorisation) + sliding-window attention, one launch.
; @launch grid=(256,1,1) block=(512,1,1) lds=%d
.amdgcn_target "amdgcn-amd-amdhsa--gfx950"
.text
.globl %s_kernel
.p2align 8
.type %s_kernel,@function
%s_kernel:
"""
TAIL = """
.section .rodata,"a"
.p2align 6
.amdhsa_kernel %s_kernel
  .amdhsa_next_free_vgpr 256
  .amdhsa_next_free_sgpr 102
  .amdhsa_accum_offset 256
  .amdhsa_group_segment_fixed_size 0
  .amdhsa_kernarg_size 88
  .amdhsa_user_sgpr_count 2
  .amdhsa_user_sgpr_kernarg_segment_ptr 1
  .amdhsa_system_sgpr_workgroup_id_x 1
.end_amdhsa_kernel
"""


def generate(cfg, verbose=False):
    a = G(cfg)
    entry(a)
    b_path(a)
    a_path(a)
    body, n = fix_hazards_fast(a.lines, verbose)
    return HEAD % (LDSSZ, NAME, NAME, NAME) + "\n".join(body) + TAIL % NAME


if __name__ == "__main__":
    cfg = Cfg()
    out = "cdna_kernels/%s.s" % NAME
    verbose = False
    for arg in sys.argv[1:]:
        if arg == "-v":
            verbose = True
        elif arg.startswith("out="):
            out = arg[4:]
        else:
            k, v = arg.split("=", 1)
            cur = getattr(cfg, k)
            if isinstance(cur, bool):
                v = v in ("1", "true")
            elif isinstance(cur, int):
                v = int(v, 0)
            else:
                v = (" " + v.replace("+", " ")) if v else ""
            setattr(cfg, k, v)
    open(out, "w").write(generate(cfg, verbose))
```

```python
import sys, struct, math
from asmlib import *

NAME = "concat_heads__spectral_fnet__sliding_block__prompt"


class Cfg:
    stamps = False
    nt_in = ""
    out_pol = " sc1"
    wsbase = 0
    prio = True


KOFF, VOFF, GOFF, OOFF, FOFF, TOFF, WSSZ = 0, 0x1C0000, 0x380000, 0x540000, 0x740000, 0x780000, 0x800000
F_KV, F_O, F_G = 0, 224, 480
WKV, XR, AR, SY, LDSSZ = 0, 57344, 106496, 155648, 156672
KA, VA = 0, 24576
WQ = XR + 16384
SY_CKV, SY_CG, SY_B, SY_A = SY, SY + 4, SY + 16, SY + 32
OOB = 0x40000000


def f2u(x):
    return struct.unpack("<I", struct.pack("<f", x))[0]


class G(Asm):
    def __init__(self, cfg):
        super().__init__()
        self.cfg = cfg
        self.vq = []
        self.dq = []
        self.nst = 0

    def vm(self, tag, text):
        self(text)
        self.vq.append(tag)

    def ds(self, tag, text):
        self(text)
        self.dq.append(tag)
        assert len(self.dq) <= 15 or True

    @staticmethod
    def _cnt(q, tag):
        last = max(k for k, t in enumerate(q) if t == tag)
        n = len(q) - 1 - last
        del q[:last + 1]
        return n

    def wait(self, vm=None, ds=None):
        p = []
        if vm is not None:
            if vm == "*":
                self.vq.clear()
                p.append("vmcnt(0)")
            elif vm in self.vq:
                p.append("vmcnt(%d)" % self._cnt(self.vq, vm))
        if ds is not None:
            if ds == "*":
                self.dq.clear()
                p.append("lgkmcnt(0)")
            elif ds in self.dq:
                n = self._cnt(self.dq, ds)
                assert n <= 15
                p.append("lgkmcnt(%d)" % n)
        if p:
            self("s_waitcnt " + " ".join(p))

    def snap(self):
        return (list(self.vq), list(self.dq))

    def restore(self, s):
        self.vq, self.dq = list(s[0]), list(s[1])

    def stamp(self, k):
        if not self.cfg.stamps:
            return
        self("s_memrealtime s[100:101]")
        self("s_waitcnt lgkmcnt(0)")
        self.dq.clear()
        self("s_mov_b32 s%d, s100" % (84 + k))

    def stamp_flush(self):
        if not self.cfg.stamps:
            return
        self("s_mov_b64 exec, -1")
        for k in range(16):
            self("v_writelane_b32 v1, s%d, %d" % (84 + k, k))
        self("s_lshl_b32 s100, s2, 3")
        self("s_add_u32 s100, s100, s3")
        self("s_lshl_b32 s100, s100, 6")
        self("s_add_u32 s100, s100, %d" % TOFF)
        self("v_lshlrev_b32 v2, 2, v0")
        self("s_mov_b64 exec, 0xffff")
        self("buffer_store_dword v1, v2, s[24:27], s100 offen")


sX, sJ, sI, sH, sHL, sW = 32, 33, 34, 35, 36, 37
sT0, sT1, sT2, sT3 = 38, 39, 40, 41
sCNT = 42
sHASKV, sC = 43, 44


def lds_wait_words(a, vaddr, stage, vtmp):
    L = a.label("spin")
    Lx = a.label("spinx")
    a("s_mov_b32 s%d, 0x100000" % sCNT)
    a(L + ":")
    a("ds_read_b32 v%d, v%d" % (vtmp, vaddr))
    a("s_sub_u32 s%d, s%d, 1" % (sCNT, sCNT))
    a("s_cbranch_scc1 %s" % Lx)
    a("s_waitcnt lgkmcnt(0)")
    a("v_cmp_gt_u32 vcc, %d, v%d" % (stage, vtmp))
    a("s_cbranch_vccnz %s" % L)
    a(Lx + ":")
    a.dq.clear()


def lds_set_word(a, vaddr, stage, vtmp):
    a("v_mov_b32 v%d, %d" % (vtmp, stage))
    a.ds("sync", "ds_write_b32 v%d, v%d" % (vaddr, vtmp))


def poll_atomic(a, voff, want, vtmp):
    L = a.label("poll")
    Lx = a.label("pollx")
    a("s_mov_b32 s%d, 0x20000" % sCNT)
    a(L + ":")
    a("v_mov_b32 v%d, 0" % vtmp)
    a("buffer_atomic_add v%d, v%d, s[24:27], 0 offen sc0 sc1" % (vtmp, voff))
    a("s_sub_u32 s%d, s%d, 1" % (sCNT, sCNT))
    a("s_cbranch_scc1 %s" % Lx)
    a("s_waitcnt vmcnt(0)")
    a("v_cmp_ne_u32 vcc, %d, v%d" % (want, vtmp))
    a("s_cbranch_vccnz %s" % L)
    a(Lx + ":")
    a("s_waitcnt vmcnt(0)")
    a.vq.clear()


def poll_load(a, voff, want, vtmp):
    L = a.label("poll")
    Lx = a.label("pollx")
    a("s_mov_b32 s%d, 0x20000" % sCNT)
    a(L + ":")
    a("buffer_load_dword v%d, v%d, s[24:27], 0 offen sc1" % (vtmp, voff))
    a("s_waitcnt vmcnt(0)")
    a("v_cmp_ne_u32 vcc, %d, v%d" % (want, vtmp))
    a("s_cbranch_vccz %s" % Lx)
    a("s_sleep 8")
    a("s_sub_u32 s%d, s%d, 1" % (sCNT, sCNT))
    a("s_cbranch_scc0 %s" % L)
    a(Lx + ":")
    a.vq.clear()


def srd(a, d, lo, size):
    a("s_mov_b32 s%d, s%d" % (d, lo))
    a("s_mov_b32 s%d, s%d" % (d + 1, lo + 1))
    a("s_mov_b32 s%d, %s" % (d + 2, size))
    a("s_mov_b32 s%d, 0x20000" % (d + 3))


def entry(a):
    cfg = a.cfg
    a("s_cmp_ge_u32 s2, 256")
    a("s_cbranch_scc1 L_end")
    a("s_getpc_b64 s[46:47]")
    a("s_load_dwordx16 s[4:19], s[0:1], 0")
    a("s_load_dwordx4 s[20:23], s[0:1], 64")
    a("s_load_dwordx2 s[24:25], s[0:1], 80")
    if cfg.stamps:
        a("s_memrealtime s[100:101]")
    a("v_lshrrev_b32 v1, 6, v0")
    a("v_and_b32 v0, 63, v0")
    a("v_readfirstlane_b32 s3, v1")
    a("s_and_b32 s%d, s2, 7" % sX)
    a("s_lshr_b32 s%d, s2, 3" % sJ)
    a("s_lshr_b32 s%d, s%d, 2" % (sHL, sJ))
    a("s_and_b32 s%d, s%d, 3" % (sT0, sJ))
    a("s_lshr_b32 s%d, s%d, 1" % (sT1, sX))
    a("s_lshl2_add_u32 s%d, s%d, s%d" % (sI, sT1, sT0))
    a("s_and_b32 s%d, s%d, 1" % (sT2, sX))
    a("s_lshl3_add_u32 s%d, s%d, s%d" % (sH, sT2, sHL))
    a("s_sub_u32 s%d, 2, s%d" % (sT3, sT2))
    a("s_cmp_gt_u32 s%d, s%d" % (sHL, sT3))
    a("s_subb_u32 s%d, s%d, 0" % (sC, sHL))
    a("s_cmp_lg_u32 s%d, s%d" % (sHL, sT3))
    a("s_cselect_b32 s%d, 1, 0" % sHASKV)
    a("s_and_b32 s%d, s3, 3" % sW)
    a("v_lshrrev_b32 v3, 3, v0")
    a("v_lshrrev_b32 v4, 4, v0")
    a("v_and_b32 v5, 7, v0")
    a("v_xor_b32 v6, v5, v4")
    a("v_lshlrev_b32 v6, 4, v6")
    a("v_mul_u32_u24 v2, 896, v3")
    a("v_add_u32 v2, v2, v6")
    a("s_cmp_ge_u32 s3, 4")
    a("s_cbranch_scc1 L_A")


def ws_out_srds(a):
    cfg = a.cfg
    if cfg.wsbase:
        a("s_add_u32 s24, s24, %d" % cfg.wsbase)
        a("s_addc_u32 s25, s25, 0")
    a("s_mov_b32 s26, %d" % WSSZ)
    a("s_mov_b32 s27, 0x20000")
    srd(a, 28, 20, "3670016")


XF = 128
ACC = 96
WB = 64
sXS = 48
sXO, sM0 = 52, 53
sTT, sNF = 54, 55
vXO = 8
vXA = 12
vWA = 16
vL16 = 18
vSYB, vSYA, vMYW = 19, 20, 21
vT = 22


def b_xdma(a, stage):
    slot = stage % 3
    a("s_add_u32 m0, s%d, %d" % (sM0, slot * 16384))
    for j in range(4):
        a.vm("x%d" % stage, "buffer_load_dwordx4 v%d, s[48:51], s%d offen offset:%d%s lds" % (
            vXO + j, sXO, 1024 * j, a.cfg.nt_in))
    a("s_add_u32 s%d, s%d, 128" % (sXO, sXO))


def b_kvloop(a, vtype):
    def reads(n):
        s, ks = divmod(n, 4)
        if ks == 0:
            a.wait(vm="x%d" % s)
            a("s_barrier")
            for q in range(4):
                a.ds("X%d" % s, "ds_read_b128 %s, v%d offset:%d" % (vr(XF + 16 * s + 4 * q, 4), vXA + q, (s % 3) * 16384))
        wb = WB + 8 * (n % 3)
        for ct in range(2):
            for jj in range(2):
                a.ds("W%d" % n, "ds_read_b64_tr_b16 %s, v%d offset:%d" % (
                    vr(wb + 4 * ct + 2 * jj, 2), vWA + ct, s * 8192 + ks * 2048 + jj * 512))

    reads(0)
    reads(1)
    for n in range(28):
        s, ks = divmod(n, 4)
        a.wait(ds="W%d" % n)
        if ks == 0 and s + 3 <= 6:
            b_xdma(a, s + 3)
        wb = WB + 8 * (n % 3)
        xf = vr(XF + 4 * n, 4)
        for ct in range(2):
            acc = vr(ACC + 16 * ct, 16)
            c = acc if n else "0"
            w = vr(wb + 4 * ct, 4)
            if vtype:
                a("v_mfma_f32_32x32x16_bf16 %s, %s, %s, %s" % (acc, xf, w, c))
            else:
                a("v_mfma_f32_32x32x16_bf16 %s, %s, %s, %s" % (acc, w, xf, c))
            if ct == 0 and n + 2 < 28:
                reads(n + 2)


def b_path(a):
    cfg = a.cfg
    a.c("---------------- group B")
    a("v_xor_b32 v%d, 64, v2" % (vXO + 1))
    a("v_mov_b32 v%d, v2" % vXO)
    a("v_add_u32 v%d, 6144, v%d" % (vXO + 1, vXO + 1))
    a("v_add_u32 v%d, 12288, v2" % (vXO + 2))
    a("v_add_u32 v%d, 12288, v%d" % (vXO + 3, vXO + 1))
    a("s_lshl2_add_u32 s%d, s%d, s%d" % (sTT, sI, sW))
    a("s_mul_i32 s%d, s%d, 28672" % (sXO, sTT))
    a("s_lshl_b32 s%d, s%d, 12" % (sM0, sW))
    a("s_add_u32 s%d, s%d, %d" % (sM0, sM0, XR))
    a("s_waitcnt lgkmcnt(0)")
    if cfg.stamps:
        a("s_mov_b32 s84, s100")
    srd(a, sXS, 14, "1835008")
    for s in range(3):
        b_xdma(a, s)
    if cfg.prio:
        a("s_setprio 1")
    ws_out_srds(a)
    a("v_and_b32 v%d, 31, v0" % vT)
    a("v_lshrrev_b32 v%d, 5, v0" % (vT + 1))
    a("v_bfe_u32 v%d, v0, 1, 3" % (vT + 2))
    a("v_xor_b32 v%d, v%d, v%d" % (vT + 2, vT + 2, vT + 1))
    a("v_lshlrev_b32 v%d, 4, v%d" % (vT + 2, vT + 2))
    a("v_lshl_add_u32 v%d, v%d, 7, v%d" % (vT + 2, vT, vT + 2))
    a("v_add_u32 v%d, s%d, v%d" % (vXA, sM0, vT + 2))
    for q in range(1, 4):
        a("v_xor_b32 v%d, %d, v%d" % (vXA + q, 32 * q, vXA))
    a("v_bfe_u32 v%d, v0, 2, 2" % (vT + 3))
    a("v_lshl_add_u32 v%d, v%d, 3, v%d" % (vT + 4, vT + 1, vT + 3))
    a("v_bfe_u32 v%d, v0, 4, 1" % (vT + 5))
    a("v_and_b32 v%d, 1, v0" % (vT + 6))
    a("v_bfe_u32 v%d, v0, 1, 1" % (vT + 7))
    a("v_lshl_add_u32 v%d, v%d, 1, v%d" % (vT + 6, vT + 6, vT + 7))
    a("v_lshl_add_u32 v%d, v%d, 2, v%d" % (vT + 6, vT + 5, vT + 6))
    a("v_and_b32 v%d, 3, v0" % (vT + 7))
    a("v_lshl_add_u32 v%d, v%d, 2, v%d" % (vT + 7, vT + 5, vT + 7))
    a("v_lshlrev_b32 v7, 3, v%d" % (vT + 6))
    a("v_lshl_add_u32 v7, v%d, 6, v7" % (vT + 4))
    a("v_add_u32 v7, %d, v7" % WQ)
    a("s_bitcmp1_b32 s%d, 0" % sX)
    a("s_cselect_b64 vcc, -1, 0")
    a("v_cndmask_b32 v%d, v%d, v%d, vcc" % (vT + 6, vT + 6, vT + 7))
    a("v_lshlrev_b32 v%d, 3, v%d" % (vT + 6, vT + 6))
    a("v_lshl_add_u32 v%d, v%d, 7, v%d" % (vT + 6, vT + 4, vT + 6))
    a("v_bfe_u32 v%d, v0, 3, 1" % (vT + 7))
    a("v_lshlrev_b32 v%d, 6, v%d" % (vT + 7, vT + 7))
    a("v_add_u32 v%d, v%d, v%d" % (vWA, vT + 6, vT + 7))
    a("v_xor_b32 v%d, 64, v%d" % (vWA + 1, vWA))
    a("v_lshlrev_b32 v%d, 4, v0" % vL16)
    a("v_and_b32 v%d, 3, v0" % vSYB)
    a("v_lshlrev_b32 v%d, 2, v%d" % (vSYB, vSYB))
    a("v_add_u32 v%d, %d, v%d" % (vSYA, SY_A, vSYB))
    a("v_add_u32 v%d, %d, v%d" % (vSYB, SY_B, vSYB))
    a("s_lshl2_add_u32 s%d, s%d, %d" % (sT0, sW, SY_B))
    a("v_mov_b32 v%d, s%d" % (vMYW, sT0))
    a("v_mul_u32_u24 v6, 7168, v%d" % (vT + 1))
    a("v_lshl_add_u32 v6, v%d, 4, v6" % vT)
    a("s_mul_i32 s%d, s%d, 28672" % (sT0, sTT))
    a("s_bitcmp1_b32 s%d, 0" % sX)
    a("s_cbranch_scc1 L_B_V")
    snap = a.snap()
    for vtype in (0, 1):
        a.restore(snap)
        if vtype:
            a("L_B_V:")
        b_kvloop(a, vtype)
        a.stamp(1)
        if vtype:
            a("s_lshl_b32 s%d, s%d, 10" % (sT1, sC))
            a("s_add_u32 s%d, s%d, s%d" % (sT0, sT0, sT1))
            a("s_add_u32 s%d, s%d, %d" % (sT0, sT0, VOFF))
            a("s_add_u32 s%d, s%d, 14336" % (sT1, sT0))
        else:
            a("s_lshl_b32 s%d, s%d, 12" % (sT1, sC))
            a("s_add_u32 s%d, s%d, s%d" % (sT0, sT0, sT1))
        a("s_cmp_eq_u32 s%d, 0" % sHASKV)
        a("s_cbranch_scc1 L_B_stored")
        for ct in range(2):
            for f in range(2):
                p = WB + 8 * ct + 4 * f
                for d in range(4):
                    r = ACC + 16 * ct + 8 * f + 2 * d
                    a("v_cvt_pk_bf16_f32 v%d, v%d, v%d" % (p + d, r, r + 1))
                if vtype:
                    a("buffer_store_dwordx4 %s, v6, s[24:27], s%d offen offset:%d sc1" % (
                        vr(p, 4), sT1 if f else sT0, 512 * ct))
                else:
                    a("buffer_store_dwordx4 %s, v%d, s[24:27], s%d offen offset:%d sc1" % (
                        vr(p, 4), vL16, sT0, 2048 * ct + 1024 * f))
        if not vtype:
            a("s_branch L_B_stored")
    a("L_B_stored:")
    a.vq.clear()
    a("v_mov_b32 v%d, 0" % (vT + 8))
    a("global_load_dword v%d, v%d, s[22:23] sc1" % (vT + 9, vT + 8))
    MSK = 56
    masks = [4 + 2 * k for k in range(8)] + [MSK + 2 * k for k in range(8)]
    a("v_lshlrev_b32 v%d, 2, v%d" % (vT + 2, vT + 1))
    a("v_sub_u32 v%d, v%d, v%d" % (vT + 2, vT, vT + 2))
    for k in range(16):
        g, r = divmod(k, 4)
        a("v_cmp_le_i32 %s, %d, v%d" % (sr(masks[k], 2), 8 * g + r, vT + 2))
    PM = 240
    a("v_mov_b32 v%d, 0xffff" % (vT + 3))
    a("v_mov_b32 v%d, 0xffff0000" % (vT + 4))
    for d in range(8):
        a("v_cndmask_b32 v%d, 0, v%d, %s" % (PM + d, vT + 3, sr(masks[2 * d], 2)))
        a("v_cndmask_b32 v%d, 0, v%d, %s" % (vT + 5, vT + 4, sr(masks[2 * d + 1], 2)))
        a("v_or_b32 v%d, v%d, v%d" % (PM + d, PM + d, vT + 5))
    a("s_mul_i32 s%d, s%d, 7" % (sT0, sH))
    a("s_lshr_b32 s72, s%d, 1" % sT0)
    a("s_lshr_b32 s73, s72, 3")
    a("s_add_u32 s74, s72, 3")
    a("s_lshr_b32 s74, s74, 3")
    a("s_lshr_b32 s75, s%d, 4" % sT0)
    a("s_add_u32 s75, s75, 7")
    a("s_add_u32 s76, s%d, 6" % sT0)
    a("s_lshr_b32 s76, s76, 4")
    a("s_add_u32 s76, s76, 7")
    a("s_mul_i32 s77, s%d, 3" % sW)
    a("s_lshr_b32 s78, s77, 2")
    a("s_add_u32 s79, s77, 2")
    a("s_lshr_b32 s79, s79, 2")
    a("s_add_u32 s78, s78, s%d" % sI)
    a("s_add_u32 s79, s79, s%d" % sI)
    vPO = 5
    a("v_mov_b32 v%d, 0" % vPO)
    for l in range(8):
        a("s_mul_i32 s%d, s%d, 14" % (sT1, 78 + (l & 1)))
        a("s_add_u32 s%d, s%d, s%d" % (sT1, sT1, 73 + (l >> 1)))
        a("v_writelane_b32 v%d, s%d, %d" % (vPO, sT1, l))
    a("v_cmp_le_u32 s[80:81], 28, v%d" % vPO)
    a("v_lshlrev_b32 v%d, 7, v%d" % (vPO, vPO))
    a("v_add_u32 v%d, %d, v%d" % (vPO, FOFF + (F_KV - 28) * 128, vPO))
    a("s_min_u32 s%d, s%d, 7" % (sNF, sTT))
    Lg = a.label("go")
    Lgx = a.label("gox")
    a("s_mov_b32 s%d, 0x20000" % sCNT)
    a(Lg + ":")
    a("s_waitcnt vmcnt(0)")
    a("v_cmp_ne_u32 vcc, 0, v%d" % (vT + 9))
    a("s_cbranch_vccnz %s" % Lgx)
    a("global_load_dword v%d, v%d, s[22:23] sc1" % (vT + 9, vT + 8))
    a("s_sub_u32 s%d, s%d, 1" % (sCNT, sCNT))
    a("s_cbranch_scc0 %s" % Lg)
    a(Lgx + ":")
    a.stamp(2)
    a("s_mov_b64 exec, 1")
    a("v_mov_b32 v%d, %d" % (vT + 3, SY_CKV))
    a("v_mov_b32 v%d, 1" % (vT + 4))
    a("ds_add_rtn_u32 v%d, v%d, v%d" % (vT + 5, vT + 3, vT + 4))
    a("s_mul_i32 s%d, s%d, 14" % (sT1, sI))
    a("s_add_u32 s%d, s%d, s%d" % (sT1, sT1, sC))
    a("s_and_b32 s%d, s%d, 1" % (sT2, sX))
    a("s_mul_i32 s%d, s%d, 7" % (sT2, sT2))
    a("s_add_u32 s%d, s%d, s%d" % (sT1, sT1, sT2))
    a("s_lshl_b32 s%d, s%d, 7" % (sT1, sT1))
    a("s_add_u32 s%d, s%d, %d" % (sT1, sT1, FOFF + F_KV * 128))
    a("s_waitcnt lgkmcnt(0)")
    a("v_readfirstlane_b32 s%d, v%d" % (sT2, vT + 5))
    a("s_mul_i32 s%d, s%d, s%d" % (sT2, sT2, sHASKV))
    a("s_cmp_eq_u32 s%d, 3" % sT2)
    a("s_cbranch_scc0 L_B_noflag")
    a("buffer_atomic_add v%d, off, s[24:27], s%d sc1" % (vT + 4, sT1))
    a("L_B_noflag:")
    a("s_mov_b64 exec, -1")
    lds_wait_words(a, vSYA, 1, vT + 3)
    a.stamp(3)
    QB = 64

    def qreads(n):
        for jj in range(2):
            a.ds("Q%d" % n, "ds_read_b64_tr_b16 %s, v7 offset:%d" % (vr(QB + 4 * (n % 6) + 2 * jj, 2), n * 1024 + jj * 256))
    for n in range(5):
        qreads(n)
    for n in range(28):
        a.wait(ds="Q%d" % n)
        a("v_mfma_f32_32x32x16_bf16 %s, %s, %s, %s" % (vr(ACC, 16), vr(QB + 4 * (n % 6), 4), vr(XF + 4 * n, 4),
                                                      vr(ACC, 16) if n else "0"))
        if n + 5 < 28:
            qreads(n + 5)
    a("v_mov_b32 v%d, %d" % (vT + 4, SY_CKV))
    lds_wait_words(a, vT + 4, 4, vT + 3)
    a.stamp(4)
    a("s_and_b64 exec, s[80:81], 0xff")
    a("s_cbranch_execz L_B_polled")
    poll_atomic(a, vPO, 1, vT + 3)
    a("L_B_polled:")
    a("s_mov_b64 exec, -1")
    a.stamp(5)
    a("s_mov_b32 s48, s24")
    a("s_mov_b32 s49, s25")
    a("s_mov_b32 s51, 0x20000")
    a("s_lshl2_add_u32 s78, s%d, s77" % sI)
    a("s_lshl_b32 s73, s72, 9")
    a("s_mul_i32 s74, s%d, 448" % sH)
    a("s_add_u32 s74, s74, %d" % VOFF)
    a("s_lshl_b32 s77, s77, 11")
    a("v_add_u32 v%d, %d, v6" % (vT + 5, 14336 - 1024))
    for kind in range(2):
        if kind:
            a("s_mov_b32 exec_lo, 0x0fffffff")
            a("s_mov_b32 exec_hi, 0x0fffffff")
        for t in range(3):
            a("s_add_u32 s%d, s78, %d" % (sT0, t))
            a("s_sub_u32 s%d, s%d, 8" % (sT0, sT0))
            a("s_cselect_b32 s50, 0, s26")
            a("s_cselect_b32 s%d, 0, s%d" % (sT0, sT0))
            a("s_mul_i32 s%d, s%d, 28672" % (sT0, sT0))
            a("s_add_u32 s%d, s%d, s%d" % (sT0, sT0, 74 if kind else 73))
            a("s_add_u32 m0, s77, %d" % ((VA if kind else KA) + 2048 * t))
            for f in range(2):
                vo = (6 if f == 0 else vT + 5) if kind else vL16
                a.vm("V" if kind else "K", "buffer_load_dwordx4 v%d, s[48:51], s%d offen offset:%d sc1 lds" % (vo, sT0, 1024 * f))
    a("s_mov_b64 exec, 0xfff")
    a("v_lshlrev_b32 v%d, 9, v0" % (vT + 3))
    a("v_add_u32 v%d, s77, v%d" % (vT + 3, vT + 3))
    for d in range(4):
        a("v_mov_b32 v%d, 0x3f803f80" % (28 + d))
    a.ds("ones", "ds_write_b128 v%d, v[28:31] offset:%d" % (vT + 3, VA + 448))
    a("s_mov_b64 exec, -1")
    QF = 248
    a("s_mov_b32 s%d, 0x%08x" % (sT0, f2u(math.log2(math.e) / math.sqrt(28.0))))
    for k in range(16):
        a("v_mul_f32 v%d, s%d, v%d" % (ACC + k, sT0, ACC + k))
    for d in range(8):
        a("v_cvt_pk_bf16_f32 v%d, v%d, v%d" % (QF + d, ACC + 2 * d, ACC + 2 * d + 1))
    a("s_bitcmp1_b32 s%d, 0" % sH)
    a("s_cselect_b32 vcc_lo, 0, -1")
    a("s_mov_b32 vcc_hi, -1")
    a("s_mov_b32 s82, -1")
    a("s_cselect_b32 s83, -1, 0")
    a("v_cndmask_b32 v%d, 0, v%d, vcc" % (QF, QF))
    a("v_cndmask_b32 v%d, 0, v%d, vcc" % (QF + 1, QF + 1))
    a("v_cndmask_b32 v%d, 0, v%d, s[82:83]" % (QF + 6, QF + 6))
    a("v_cndmask_b32 v%d, 0, v%d, s[82:83]" % (QF + 7, QF + 7))
    vKA = 4
    a("s_lshl_b32 s%d, s%d, 11" % (sT0, sW))
    a("v_add_u32 v%d, s%d, v%d" % (vKA, sT0, vL16))
    a.wait(vm="K")
    lds_set_word(a, vMYW, 1, vT + 3)
    lds_wait_words(a, vSYB, 1, vT + 3)
    a.stamp(6)
    KF = 128
    SA, SB, SC = 32, 48, 64
    CI, OA = 80, 96
    VF = 200
    PF = 224
    vM0, vM1 = vT, vT + 2
    order = [8, 0, 7, 6, 5, 4, 3, 2, 1]

    def kread(j):
        for f in range(2):
            a.ds("K%d" % j, "ds_read_b128 %s, v%d offset:%d" % (vr(KF + 8 * j + 4 * f, 4), vKA, KA + 2048 * j + 1024 * f))

    def vread(j, buf):
        for f in range(2):
            a.ds("V%d" % j, "ds_read_b128 %s, v%d offset:%d" % (vr(VF + 8 * buf + 4 * f, 4), vKA, VA + 2048 * j + 1024 * f))

    def qk(j, dst, f, c0):
        a("v_mfma_f32_32x32x16_bf16 %s, %s, %s, %s" % (vr(dst, 16), vr(KF + 8 * j + 4 * f, 4), vr(QF + 4 * f, 4),
                                                      vr(dst, 16) if f else c0))
    for j in order[:7]:
        kread(j)
    a.wait(ds="K8")
    qk(8, SA, 0, "0")
    qk(8, SA, 1, "0")
    kread(order[7])
    a.wait(ds="K0")
    qk(0, SB, 0, "0")
    qk(0, SB, 1, "0")
    kread(order[8])
    a.wait(ds="K7")
    qk(7, SC, 0, "0")
    a("s_cmp_ge_u32 s%d, 8" % sTT)
    qk(7, SC, 1, "0")
    a("s_cbranch_scc1 L_B_merge")
    for k in range(16):
        a("v_mov_b32 v%d, 0xff800000" % (SB + k))
    a("L_B_merge:")
    for k in range(16):
        a("v_cndmask_b32 v%d, v%d, v%d, %s" % (SA + k, SB + k, SA + k, sr(masks[k], 2)))
    a.wait(ds="K6")
    qk(6, SB, 0, "0")
    a("v_max3_f32 v%d, v%d, v%d, v%d" % (vM0, SA, SA + 1, SA + 2))
    a("v_max3_f32 v%d, v%d, v%d, v%d" % (vM1, SA + 3, SA + 4, SA + 5))
    for k in range(6, 14, 4):
        a("v_max3_f32 v%d, v%d, v%d, v%d" % (vM0, vM0, SA + k, SA + k + 1))
        a("v_max3_f32 v%d, v%d, v%d, v%d" % (vM1, vM1, SA + k + 2, SA + k + 3))
    qk(6, SB, 1, "0")
    a("v_max3_f32 v%d, v%d, v%d, v%d" % (vM0, vM0, SA + 14, SA + 15))
    a.wait(ds="*")
    bufs = [SC, SB, CI]
    for n, j in enumerate(range(7, 0, -1)):
        cur = bufs[n % 3]
        a("s_cmp_eq_u32 s%d, %d" % (sNF, n))
        a("s_cbranch_scc1 L_B_p1done")
        for half in range(2):
            if j - 2 >= 1:
                qk(j - 2, bufs[(n + 2) % 3], half, "0")
            for k in range(8 * half, 8 * half + 8, 4):
                a("v_max3_f32 v%d, v%d, v%d, v%d" % (vM0, vM0, cur + k, cur + k + 1))
                a("v_max3_f32 v%d, v%d, v%d, v%d" % (vM1, vM1, cur + k + 2, cur + k + 3))
    a("L_B_p1done:")
    a.wait(vm="*")
    lds_set_word(a, vMYW, 2, vT + 3)
    a("v_max_f32 v%d, v%d, v%d" % (vM0, vM0, vM1))
    a("v_mov_b32 v%d, v%d" % (vM1, vM0))
    a("v_permlane32_swap_b32 v%d, v%d" % (vM0, vM1))
    a("v_max_f32 v%d, v%d, v%d" % (vM0, vM0, vM1))
    lds_wait_words(a, vSYB, 2, vT + 3)
    a.stamp(7)
    vread(8, 0)
    vread(0, 1)
    vread(7, 2)
    for k in range(16):
        a("v_sub_f32 v%d, 0, v%d" % (CI + k, vM0))
    qk(7, SB, 0, vr(CI, 16))
    for k in range(16):
        a("v_sub_f32 v%d, v%d, v%d" % (SA + k, SA + k, vM0))
        if k == 5:
            qk(7, SB, 1, "0")
    for k in range(16):
        a("v_exp_f32 v%d, v%d" % (SA + k, SA + k))
    for d in range(8):
        a("v_cvt_pk_bf16_f32 v%d, v%d, v%d" % (PF + 8 + d, SA + 2 * d, SA + 2 * d + 1))
    for d in range(8):
        a("v_and_b32 v%d, v%d, v%d" % (PF + d, PM + d, PF + 8 + d))
    a.wait(ds="V0")

    def pv(buf, p, f, first=False):
        a("v_mfma_f32_32x32x16_bf16 %s, %s, %s, %s" % (vr(OA, 16), vr(VF + 8 * buf + 4 * f, 4), vr(p + 4 * f, 4),
                                                      "0" if first else vr(OA, 16)))
    pv(0, PF, 0, True)
    for d in range(8):
        a("v_xor_b32 v%d, v%d, v%d" % (PF + 8 + d, PF + d, PF + 8 + d))
    a("s_cmp_lt_u32 s%d, 8" % sTT)
    pv(0, PF, 1)
    a("s_cbranch_scc1 L_B_notail")
    pv(1, PF + 8, 0)
    pv(1, PF + 8, 1)
    a("L_B_notail:")
    sb = [SB, SC]
    for n, j in enumerate(range(7, 0, -1)):
        cur, nxt = sb[n % 2], sb[(n + 1) % 2]
        vb = (2 + n) % 3
        p = PF + 8 * (n % 2)
        a("s_cmp_eq_u32 s%d, %d" % (sNF, n))
        a("s_cbranch_scc1 L_B_p2done")
        if j > 1:
            vread(j - 1, (vb + 1) % 3)
        for k in range(4):
            a("v_exp_f32 v%d, v%d" % (cur + k, cur + k))
        if j > 1:
            qk(j - 1, nxt, 0, vr(CI, 16))
        for k in range(4, 8):
            a("v_exp_f32 v%d, v%d" % (cur + k, cur + k))
        if j > 1:
            qk(j - 1, nxt, 1, "0")
        for k in range(8, 10):
            a("v_exp_f32 v%d, v%d" % (cur + k, cur + k))
        for d in range(4):
            a("v_cvt_pk_bf16_f32 v%d, v%d, v%d" % (p + d, cur + 2 * d, cur + 2 * d + 1))
        for k in range(10, 12):
            a("v_exp_f32 v%d, v%d" % (cur + k, cur + k))
        a.wait(ds="V%d" % j)
        pv(vb, p, 0)
        for k in range(12, 16):
            a("v_exp_f32 v%d, v%d" % (cur + k, cur + k))
        for d in range(4, 8):
            a("v_cvt_pk_bf16_f32 v%d, v%d, v%d" % (p + d, cur + 2 * d, cur + 2 * d + 1))
        pv(vb, p, 1)
    a("L_B_p2done:")
    a.wait(ds="*")
    a("s_lshl_b32 s%d, s%d, 15" % (sT0, sTT))
    a("s_lshl_b32 s%d, s%d, 11" % (sT1, sH))
    a("s_add_u32 s%d, s%d, s%d" % (sT0, sT0, sT1))
    a("s_add_u32 s%d, s%d, %d" % (sT0, sT0, OOFF))
    a("s_lshr_b32 s%d, s%d, 2" % (sT1, sH))
    a("s_lshl2_add_u32 s%d, s%d, s%d" % (sT1, sTT, sT1))
    a("s_lshl_b32 s%d, s%d, 7" % (sT1, sT1))
    a("s_add_u32 s%d, s%d, %d" % (sT1, sT1, FOFF + F_O * 128))
    a("s_mov_b32 vcc_lo, -1")
    a("s_mov_b32 vcc_hi, 0")
    a("v_mov_b32 v%d, v%d" % (vM0, OA + 12))
    a("v_mov_b32 v%d, v%d" % (vM1, OA + 12))
    a("v_permlane32_swap_b32 v%d, v%d" % (vM0, vM1))
    a("v_rcp_f32 v%d, v%d" % (vM1, vM1))
    for f in range(2):
        for k in range(8 * f, 8 * f + 8):
            a("v_mul_f32 v%d, v%d, v%d" % (OA + k, vM1, OA + k))
        for d in range(4 * f, 4 * f + 4):
            a("v_cvt_pk_bf16_f32 v%d, v%d, v%d" % (PF + d, OA + 2 * d, OA + 2 * d + 1))
        if f:
            a("v_cndmask_b32 v%d, 0, v%d, vcc" % (PF + 6, PF + 6))
            a("v_cndmask_b32 v%d, 0, v%d, vcc" % (PF + 7, PF + 7))
        a("buffer_store_dwordx4 %s, v%d, s[24:27], s%d offen offset:%d sc1" % (vr(PF + 4 * f, 4), vL16, sT0, 1024 * f))
    a.stamp(8)
    sU, sET, sRT0, sMIR, sSP = 72, 73, 74, 75, 76
    a("s_cmp_ge_u32 s%d, 14" % sJ)
    a("s_cselect_b32 s%d, 14, 0" % sT2)
    a("s_addc_u32 s%d, s%d, s%d" % (sU, sX, sX))
    a("s_sub_u32 s%d, s%d, s%d" % (sET, sJ, sT2))
    a("s_cmp_eq_u32 s%d, 0" % sU)
    a("s_cselect_b32 s%d, 3, 2" % sT2)
    a("s_cselect_b32 s%d, 1, 0" % sSP)
    a("s_cmp_ge_u32 s%d, 28" % sJ)
    a("s_cselect_b32 s%d, 0, s%d" % (sT2, sT2))
    a("s_lshl_b32 s%d, s%d, 10" % (sRT0, sW))
    a("s_add_u32 s%d, s%d, s%d" % (sRT0, sRT0, sU))
    a("s_cmp_eq_u32 s%d, 2" % sW)
    a("s_cselect_b32 s%d, 16, s%d" % (sRT0, sRT0))
    a("s_cselect_b32 s%d, 2, s%d" % (sSP, sSP))
    a("v_mov_b32 v%d, 1" % (vT + 4))
    a("s_waitcnt vmcnt(0)")
    a("s_mov_b64 exec, 1")
    a("buffer_atomic_add v%d, off, s[24:27], s%d sc1" % (vT + 4, sT1))
    a("s_mov_b64 exec, -1")
    a.stamp(9)
    a("s_cmp_ge_u32 s%d, s%d" % (sW, sT2))
    a("s_cbranch_scc1 L_B_done")
    a("v_lshlrev_b32 v%d, 7, v0" % vPO)
    a("v_add_u32 v%d, %d, v%d" % (vPO, FOFF + F_G * 128, vPO))
    a("s_mov_b64 exec, 0x7f")
    poll_load(a, vPO, 32, vT + 3)
    a("s_mov_b64 exec, -1")
    a.stamp(10)
    GA, GB, M1, M2, PA, QA = 32, 64, 128, 160, 96, 112
    vE, vHH, vCA, vCB, vTAU, vRA, vRB = 8, 9, 10, 11, 12, 13, 14
    a("v_and_b32 v%d, 31, v0" % vT)
    a("v_lshrrev_b32 v%d, 5, v0" % vHH)
    a("s_lshl_b32 s%d, s%d, 5" % (sT0, sET))
    a("v_add_u32 v%d, s%d, v%d" % (vE, sT0, vT))
    a("v_sub_u32 v%d, 448, v%d" % (vT + 2, vE))
    a("v_min_u32 v%d, v%d, v%d" % (vCA, vE, vT + 2))
    a("v_max_u32 v%d, v%d, v%d" % (vCB, vE, vT + 2))
    a("v_mul_u32_u24 v%d, 7168, v%d" % (vT + 3, vHH))
    a("v_cmp_eq_u32 vcc, 0, v%d" % vCA)
    a("v_cmp_eq_u32 s[82:83], v%d, v%d" % (vCA, vCB))
    a("v_lshl_add_u32 v%d, v%d, 3, v%d" % (vCA, vCA, vT + 3))
    a("v_lshl_add_u32 v%d, v%d, 3, v%d" % (vCB, vCB, vT + 3))
    a("s_or_b64 vcc, vcc, s[82:83]")
    a("v_mov_b32 v%d, 0x%x" % (vT + 4, OOB))
    a("v_cndmask_b32 v%d, v%d, v%d, vcc" % (vCB, vCB, vT + 4))
    a("s_mul_i32 s%d, s%d, 114688" % (sT1, sU))
    a("s_add_u32 s%d, s%d, %d" % (sT1, sT1, GOFF))
    for ks in range(8):
        for (dst, vo) in ((GA, vCA), (GB, vCB)):
            for pp in range(2):
                a.vm("G%d" % ks, "buffer_load_dwordx2 %s, v%d, s[24:27], s%d offen offset:%d sc1" % (
                    vr(dst + 4 * ks + 2 * pp, 2), vo, sT1, 3584 * pp))
        if ks < 7:
            a("s_add_u32 s%d, s%d, 14336" % (sT1, sT1))
    a("v_lshl_add_u32 v%d, v%d, 5, s%d" % (vT + 2, vT, sRT0))
    a("v_cvt_f32_u32 v%d, v%d" % (vTAU, vT + 2))
    a("v_mul_f32 v%d, 0x%08x, v%d" % (vTAU, f2u(1 / 2048.0), vTAU))
    a("v_sub_u32 v%d, 2048, v%d" % (vT + 3, vT + 2))
    a("v_mul_u32_u24 v%d, 1792, v%d" % (vT + 2, vT + 2))
    a("v_mul_u32_u24 v%d, 1792, v%d" % (vT + 3, vT + 3))
    a("s_cmp_eq_u32 s%d, 1" % sSP)
    a("s_cselect_b64 vcc, -1, 0")
    a("v_cndmask_b32 v%d, v%d, v%d, vcc" % (vT + 3, vT + 3, vT + 4))
    a("s_cmp_ge_u32 s%d, 7" % sET)
    a("s_cselect_b64 vcc, -1, 0")
    a("v_cndmask_b32 v%d, v%d, v%d, vcc" % (vRA, vT + 2, vT + 3))
    a("v_cndmask_b32 v%d, v%d, v%d, vcc" % (vRB, vT + 3, vT + 2))
    a("v_lshl_add_u32 v%d, v%d, 4, v%d" % (vRA, vHH, vRA))
    a("v_lshl_add_u32 v%d, v%d, 4, v%d" % (vRB, vHH, vRB))
    a("s_lshl_b32 s%d, s%d, 6" % (sT0, sET))
    a("v_lshlrev_b32 v%d, 2, v%d" % (vT + 2, vHH))
    a("v_cvt_f32_u32 v%d, v%d" % (vT + 2, vT + 2))
    a("v_mul_f32 v%d, v%d, v%d" % (vT + 2, vT + 2, vTAU))
    a("v_mul_f32 v%d, 0x%08x, v%d" % (vT + 3, f2u(5.0), vTAU))
    for n in range(32):
        c, s = vT + 4 + 2 * (n % 2), vT + 5 + 2 * (n % 2)
        a("v_cos_f32 v%d, v%d" % (c, vT + 2))
        a("v_sin_f32 v%d, v%d" % (s, vT + 2))
        if n < 31:
            a("v_add_f32 v%d, v%d, v%d" % (vT + 2, vT + 2, vT + 3 if n % 4 == 3 else vTAU))
        a("v_cvt_pk_bf16_f32 v%d, v%d, -v%d" % (M1 + n, c, s))
        a("v_cvt_pk_bf16_f32 v%d, v%d, v%d" % (M2 + n, s, c))
    a("s_cmp_eq_u32 s%d, 0" % sSP)
    a("s_cbranch_scc1 L_B_mok")
    a("s_cmp_eq_u32 s%d, 1" % sSP)
    a("s_cselect_b32 s%d, 0, 16" % sT1)
    for n in range(64):
        a("v_and_b32 v%d, 0xffff, v%d" % (M1 + n, M1 + n))
        a("v_lshlrev_b32 v%d, s%d, v%d" % (M1 + n, sT1, M1 + n))
    a("L_B_mok:")
    for ks in range(8):
        a.wait(vm="G%d" % ks)
        a("v_mfma_f32_32x32x16_bf16 %s, %s, %s, %s" % (vr(PA, 16), vr(GA + 4 * ks, 4), vr(M1 + 4 * ks, 4), vr(PA, 16) if ks else "0"))
        a("v_mfma_f32_32x32x16_bf16 %s, %s, %s, %s" % (vr(QA, 16), vr(GB + 4 * ks, 4), vr(M2 + 4 * ks, 4), vr(QA, 16) if ks else "0"))
    for sign, vrow, T, P in ((0, vRA, 192, 224), (1, vRB, 208, 232)):
        for k in range(16):
            a("%s v%d, v%d, v%d" % ("v_add_f32" if sign else "v_sub_f32", T + k, PA + k, QA + k))
        for d in range(8):
            a("v_cvt_pk_bf16_f32 v%d, v%d, v%d" % (P + d, T + 2 * d, T + 2 * d + 1))
        for f in range(2):
            a("v_permlane32_swap_b32 v%d, v%d" % (P + 4 * f, P + 4 * f + 2))
            a("v_permlane32_swap_b32 v%d, v%d" % (P + 4 * f + 1, P + 4 * f + 3))
        for f in range(2):
            a("buffer_store_dwordx4 %s, v%d, s[28:31], s%d offen offset:%d%s" % (vr(P + 4 * f, 4), vrow, sT0, 32 * f, cfg.out_pol))
    a("L_B_done:")
    if cfg.stamps:
        a("s_waitcnt vmcnt(0)")
    a.stamp(11)
    a.stamp_flush()
    a("s_endpgm")


def a_path(a):
    cfg = a.cfg
    a.vq.clear()
    a.dq.clear()
    a("L_A:")
    a.c("---------------- group A")
    sWS = 48
    sXA = 52
    sRS = 56
    sWO = 60
    sO0, sO1, sM = 64, 65, 66
    sRG, sCN, sHASA, sTTo, sCP = 67, 68, 69, 70, 71
    vW0, vW1, vWQ = 8, 9, 10
    a("v_lshlrev_b32 v7, 2, v4")
    a("v_and_b32 v7, 4, v7")
    a("v_xor_b32 v7, v7, v5")
    a("v_lshlrev_b32 v7, 4, v7")
    a("v_mul_u32_u24 v%d, 2688, v3" % vW0)
    a("v_add_u32 v%d, v%d, v7" % (vW0, vW0))
    a("v_add_u32 v%d, %d, v%d" % (vW1, 8 * 2688 - 1024, vW0))
    a("s_mul_i32 s%d, s%d, 7" % (sT2, sT2))
    a("s_add_u32 s%d, s%d, s%d" % (sT2, sT2, sC))
    a("s_lshl_b32 s%d, s%d, 7" % (sT2, sT2))
    a("s_mul_i32 s%d, s%d, %d" % (sO0, sW, 16 * 2688))
    a("s_add_u32 s%d, s%d, s%d" % (sO0, sO0, sT2))
    a("s_add_u32 s%d, s%d, 896" % (sO0, sO0))
    a("s_lshl_b32 s%d, s%d, 11" % (sM, sW))
    a("s_mul_i32 s50, s%d, 1204224" % sHASKV)
    a("s_mov_b32 s51, 0x20000")
    a("s_waitcnt lgkmcnt(0)")
    if cfg.stamps:
        a("s_mov_b32 s84, s100")
    a("s_mov_b32 s48, s16")
    a("s_mov_b32 s49, s17")
    for s in range(7):
        a("s_add_u32 m0, s%d, %d" % (sM, WKV + 8192 * s))
        a.vm("w%d" % s, "buffer_load_dwordx4 v%d, s[48:51], s%d offen%s lds" % (vW0, sO0, cfg.nt_in))
        a.vm("w%d" % s, "buffer_load_dwordx4 v%d, s[48:51], s%d offen offset:1024%s lds" % (vW1, sO0, cfg.nt_in))
        if s < 6:
            a("s_add_u32 s%d, s%d, %d" % (sO0, sO0, 64 * 2688))
        if s == 0:
            a("s_lshl2_add_u32 s%d, s%d, s%d" % (sT0, sJ, sW))
            a("s_lshl_b32 s%d, s%d, 8" % (sT0, sT0))
            a("v_lshl_add_u32 v11, v0, 7, s%d" % sT0)
            a("v_min_u32 v11, L_end-%s_kernel-64, v11" % NAME)
            a("s_mov_b64 exec, 3")
            a.vm("pf", "global_load_dword v127, v11, s[46:47]")
            a("s_mov_b64 exec, -1")
            a("v_lshl_add_u32 v13, v0, 2, 0")
            a("v_add_u32 v13, %d, v13" % SY)
            a("v_mov_b32 v14, 0")
            a("ds_write_b32 v13, v14")
    ws_out_srds(a)
    a("s_mov_b32 s50, 1204224")
    a("s_cmp_lg_u32 s2, 64")
    a("s_cbranch_scc1 L_A_noclear")
    a("s_cmp_lg_u32 s3, 4")
    a("s_cbranch_scc1 L_A_noclear")
    a("v_lshlrev_b32 v15, 7, v0")
    a("v_mov_b32 v16, 1")
    for k in range(8):
        a("s_mov_b32 s%d, %d" % (sT0, FOFF + 8192 * k))
        a("buffer_store_dword v14, v15, s[24:27], s%d offen sc1" % sT0)
    a("s_waitcnt vmcnt(0)")
    a("global_store_dword v14, v16, s[22:23] sc1")
    a("s_waitcnt vmcnt(0)")
    a("L_A_noclear:")
    a("s_and_b32 s%d, s%d, 3" % (sT0, sJ))
    a("s_lshl2_add_u32 s%d, s%d, s%d" % (sRG, sX, sT0))
    a("s_and_b32 s%d, s%d, 1" % (sT0, sX))
    a("s_sub_u32 s%d, 4, s%d" % (sT0, sT0))
    a("s_cmp_gt_u32 s%d, s%d" % (sHL, sT0))
    a("s_subb_u32 s%d, s%d, 0" % (sCN, sHL))
    a("s_cmp_lg_u32 s%d, s%d" % (sHL, sT0))
    a("s_cselect_b32 s%d, 1, 0" % sHASA)
    a("s_and_b32 s%d, s%d, 7" % (sT0, sJ))
    a("s_lshl3_add_u32 s%d, s%d, s%d" % (sTTo, sX, sT0))
    a("s_lshr_b32 s%d, s%d, 3" % (sCP, sJ))
    srd(a, sXA, 4, "1835008")
    srd(a, sWO, 18, "401408")
    a("s_lshl2_add_u32 s%d, s%d, s%d" % (sT0, sCN, sW))
    a("s_cmp_lt_u32 s%d, 14" % sT0)
    a("s_cselect_b32 s56, s10, s12")
    a("s_cselect_b32 s57, s11, s13")
    a("s_mov_b32 s58, 401408")
    a("s_mov_b32 s59, 0x20000")
    a("s_cmp_eq_u32 s%d, 14" % sT0)
    a("s_cselect_b32 s72, 0x00010001, 0")
    a("s_mov_b32 s73, s72")
    a("s_mul_i32 s75, s%d, %d" % (sT0, 16 * 896))
    a("s_and_b32 s%d, s%d, 1" % (sT1, sW))
    a("s_lshl_b32 s%d, s%d, 10" % (sT1, sT1))
    a("s_lshr_b32 s%d, s%d, 1" % (sT2, sW))
    a("s_add_u32 s%d, s%d, s%d" % (sT1, sT1, sT2))
    a("s_lshl1_add_u32 s%d, s%d, s%d" % (sT1, sRG, sT1))
    a("s_mul_i32 s74, s%d, 896" % sT1)
    a("v_lshrrev_b32 v11, 2, v0")
    a("v_and_b32 v12, 3, v0")
    a("v_mul_u32_u24 v%d, 2688, v11" % vWQ)
    a("v_lshl_add_u32 v%d, v12, 4, v%d" % (vWQ, vWQ))
    a("s_mul_i32 s%d, s%d, 7" % (sT1, sH))
    a("s_lshr_b32 s%d, s%d, 1" % (sT1, sT1))
    a("s_lshl_b32 s%d, s%d, 4" % (sT1, sT1))
    a("s_mul_i32 s%d, s%d, %d" % (sO1, sW, 16 * 2688))
    a("s_add_u32 s%d, s%d, s%d" % (sO1, sO1, sT1))
    a("s_lshl_b32 s76, s%d, 10" % sW)
    vSB, vSA, vMY = 19, 20, 21
    a("v_lshlrev_b32 v%d, 2, v12" % vSB)
    a("v_add_u32 v%d, %d, v%d" % (vSA, SY_A, vSB))
    a("v_add_u32 v%d, %d, v%d" % (vSB, SY_B, vSB))
    a("s_lshl2_add_u32 s%d, s%d, %d" % (sT0, sW, SY_A))
    a("v_mov_b32 v%d, s%d" % (vMY, sT0))
    vXA0, vXA1, vR0, vR1, vFX, vFR = 22, 23, 24, 25, 26, 28
    a("v_mul_u32_u24 v%d, %d, v3" % (vXA0, 64 * 896))
    a("v_add_u32 v%d, v%d, v6" % (vXA0, vXA0))
    a("v_xor_b32 v%d, 64, v%d" % (vXA1, vXA0))
    a("v_add_u32 v%d, %d, v%d" % (vXA1, 8 * 64 * 896 - 1024, vXA1))
    a("v_mov_b32 v%d, v2" % vR0)
    a("v_xor_b32 v%d, 64, v2" % vR1)
    a("v_add_u32 v%d, 6144, v%d" % (vR1, vR1))
    a("v_and_b32 v13, 15, v0")
    a("v_bfe_u32 v15, v0, 1, 3")
    a("v_xor_b32 v15, v15, v4")
    a("v_lshlrev_b32 v15, 4, v15")
    a("v_lshl_add_u32 v15, v13, 7, v15")
    a("v_add_u32 v%d, %d, v15" % (vFX, AR))
    a("v_xor_b32 v%d, 64, v%d" % (vFX + 1, vFX))
    a("s_add_u32 s%d, s%d, 8192" % (sT0, sM))
    a("v_add_u32 v%d, s%d, v%d" % (vFR, sT0, vFX))
    a("v_add_u32 v%d, s%d, v%d" % (vFR + 1, sT0, vFX + 1))
    HF = 40
    a("v_lshlrev_b32 v16, 2, v4")
    a("v_cvt_f32_u32 v16, v16")
    a("v_and_b32 v17, 1, v0")
    a("v_cvt_f32_u32 v17, v17")
    a("v_mul_f32 v17, 0x%08x, v17" % f2u(-0.25))
    a("v_cmp_eq_u32 vcc, 1, v13")
    for f in range(2):
        a("v_lshrrev_b32 v18, 1, v13")
        if f:
            a("v_add_u32 v18, 8, v18")
            a("v_mov_b32 v30, v17")
        else:
            a("v_cndmask_b32 v18, v18, 16, vcc")
            a("v_cndmask_b32 v30, v17, 0, vcc")
        a("v_cvt_f32_u32 v18, v18")
        a("v_mul_f32 v18, 0x%08x, v18" % f2u(1 / 32.0))
        a("v_fma_f32 v30, v16, v18, v30")
        a("v_mul_f32 v31, 0x%08x, v18" % f2u(13.0))
        for j in range(8):
            a("v_cos_f32 v%d, v30" % (32 + j))
            if j < 7:
                a("v_add_f32 v30, v30, v%d" % (31 if j == 3 else 18))
        for d in range(4):
            a("v_cvt_pk_bf16_f32 v%d, v%d, v%d" % (HF + 4 * f + d, 32 + 2 * d, 33 + 2 * d))
    a("s_waitcnt lgkmcnt(0)")

    def wq(n):
        a("s_add_u32 m0, s76, %d" % (WQ + 4096 * n))
        a.vm("wq", "buffer_load_dwordx4 v%d, s[48:51], s%d offen%s lds" % (vWQ, sO1, cfg.nt_in))
        a("s_add_u32 s%d, s%d, %d" % (sO1, sO1, 64 * 2688))

    def a1dma(s):
        slot = AR + (s % 3) * 16384
        a("s_add_u32 m0, s%d, %d" % (sM, slot))
        a.vm("a%d" % s, "buffer_load_dwordx4 v%d, s[52:55], s74 offen%s lds" % (vXA0, cfg.nt_in))
        a.vm("a%d" % s, "buffer_load_dwordx4 v%d, s[52:55], s74 offen offset:1024%s lds" % (vXA1, cfg.nt_in))
        a("s_add_u32 m0, s%d, %d" % (sM, slot + 8192))
        a("s_add_u32 s74, s74, 128")
        a.vm("a%d" % s, "buffer_load_dwordx4 v%d, s[56:59], s75 offen%s lds" % (vR0, cfg.nt_in))
        a.vm("a%d" % s, "buffer_load_dwordx4 v%d, s[56:59], s75 offen offset:1024%s lds" % (vR1, cfg.nt_in))
        a("s_add_u32 s75, s75, 128")

    for s in range(7):
        if s == 0:
            a.stamp(12)
        a.wait(vm="w%d" % s)
        if s == 0:
            a.stamp(13)
        a("s_barrier")
        if s in (0, 3):
            a.stamp(14 + s // 3)
        if s == 5:
            for n in range(4):
                wq(n)
        if s == 6:
            for n in range(4, 7):
                wq(n)
    a.stamp(1)
    a("s_cmp_eq_u32 s%d, 0" % sHASA)
    a("s_cbranch_scc0 L_A_a1")
    a("s_waitcnt vmcnt(0)")
    a("v_mov_b32 v30, 9")
    a("ds_write_b32 v%d, v30" % vMY)
    a("s_branch L_A_wo")
    a("L_A_a1:")
    for s in range(3):
        a1dma(s)
    a.wait(vm="wq")
    lds_set_word(a, vMY, 1, 30)
    a.stamp(2)
    AC, FX, FR = 48, 64, 96
    a("v_mov_b32 v31, 0xbf803f80")
    for s in range(7):
        slot = (s % 3) * 16384
        a.wait(vm="a%d" % s, ds="*")
        lds_set_word(a, vMY, 2 + s, 30)
        lds_wait_words(a, vSA, 2 + s, 30)
        for kk in range(2):
            a.ds("r%d" % kk, "ds_read_b128 %s, v%d offset:%d" % (vr(FR + 4 * kk, 4), vFR + kk, slot))
            for mt in range(4):
                a.ds("f%d_%d" % (kk, mt), "ds_read_b128 %s, v%d offset:%d" % (vr(FX + 16 * kk + 4 * mt, 4), vFX + kk, slot + 2048 * mt))
        if 1 <= s and s + 2 <= 6:
            a1dma(s + 2)
        for kk in range(2):
            a.wait(ds="r%d" % kk)
            for d in range(4):
                a("v_cndmask_b32 v%d, v%d, v31, s[72:73]" % (FR + 4 * kk + d, FR + 4 * kk + d))
            for mt in range(4):
                a.wait(ds="f%d_%d" % (kk, mt))
                acc = vr(AC + 4 * mt, 4)
                a("v_mfma_f32_16x16x32_bf16 %s, %s, %s, %s" % (acc, vr(FX + 16 * kk + 4 * mt, 4), vr(FR + 4 * kk, 4),
                                                              acc if (s or kk) else "0"))
    lds_set_word(a, vMY, 9, 30)
    a.stamp(3)
    a("s_lshl2_add_u32 s%d, s%d, s%d" % (sT0, sCN, sW))
    a("s_lshl_b32 s%d, s%d, 7" % (sT0, sT0))
    a("s_mul_i32 s%d, s%d, 3584" % (sT1, sRG))
    a("s_add_u32 s%d, s%d, s%d" % (sT0, sT0, sT1))
    a("s_add_u32 s%d, s%d, %d" % (sT0, sT0, GOFF))
    a("v_mul_u32_u24 v14, %d, v4" % (2 * 114688))
    a("v_lshl_add_u32 v14, v13, 3, v14")
    for d in range(8):
        a("v_cvt_pk_bf16_f32 v%d, v%d, v%d" % (FX + d, AC + 2 * d, AC + 2 * d + 1))
    D2 = 80
    for f in range(2):
        for u in range(2):
            a("v_mfma_f32_16x16x32_bf16 %s, %s, %s, 0" % (vr(D2 + 8 * f + 4 * u, 4), vr(HF + 4 * f, 4), vr(FX + 4 * u, 4)))
    for f in range(2):
        for rr in range(2):
            p = 72 + 4 * f + 2 * rr
            for u in range(2):
                r = D2 + 8 * f + 4 * u + 2 * rr
                a("v_cvt_pk_bf16_f32 v%d, v%d, v%d" % (p + u, r, r + 1))
            a("s_add_u32 s%d, s%d, %d" % (sT1, sT0, (8 * f + rr) * 114688))
            a("buffer_store_dwordx2 %s, v14, s[24:27], s%d offen sc1" % (vr(p, 2), sT1))
    a("v_mov_b32 v15, %d" % SY_CKV)
    lds_wait_words(a, 15, 1, 30)
    a("s_waitcnt vmcnt(0)")
    a.vq.clear()
    a("s_mov_b64 exec, 1")
    a("v_mov_b32 v15, %d" % SY_CG)
    a("v_mov_b32 v16, 1")
    a("ds_add_rtn_u32 v17, v15, v16")
    a("s_lshl_b32 s%d, s%d, 7" % (sT1, sCN))
    a("s_add_u32 s%d, s%d, %d" % (sT1, sT1, FOFF + F_G * 128))
    a("s_waitcnt lgkmcnt(0)")
    a("v_readfirstlane_b32 s%d, v17" % sT2)
    a("s_cmp_eq_u32 s%d, 3" % sT2)
    a("s_cbranch_scc0 L_A_noflag")
    a("buffer_atomic_add v16, off, s[24:27], s%d sc1" % sT1)
    a("s_waitcnt vmcnt(0)")
    a("L_A_noflag:")
    a("s_mov_b64 exec, -1")
    a("L_A_wo:")
    a.stamp(4)
    vWo, vWr, vL = 8, 12, 18
    a("v_bfe_u32 v14, v0, 2, 2")
    a("v_xor_b32 v15, v14, v4")
    a("v_and_b32 v16, 3, v0")
    a("v_lshlrev_b32 v17, 4, v16")
    a("v_lshl_add_u32 v17, v15, 6, v17")
    a("v_mul_u32_u24 v30, 896, v4")
    a("v_add_u32 v17, v17, v30")
    a("s_cmp_eq_u32 s%d, 3" % sCP)
    a("s_cselect_b32 s%d, 2, 4" % sT0)
    a("v_cmp_gt_u32 vcc, s%d, v15" % sT0)
    a("v_mov_b32 v30, 0x%x" % OOB)
    a("v_cndmask_b32 v%d, v30, v17, vcc" % vWo)
    a("v_add_u32 v%d, 2560, v%d" % (vWo + 1, vWo))
    a("s_cmp_eq_u32 s%d, 3" % sW)
    a("s_cselect_b32 s%d, 0x%x, 5120" % (sT1, OOB) if False else "s_cselect_b32 s%d, 0x%x, 0" % (sT1, OOB))
    a("s_add_u32 s%d, s%d, 5120" % (sT1, sT1))
    a("v_add_u32 v%d, s%d, v%d" % (vWo + 2, sT1, vWo))
    a("v_add_u32 v%d, s%d, v%d" % (vWo + 3, sT1, vWo + 1))
    a("s_mul_i32 s%d, s%d, %d" % (sO0, sW, 16 * 896))
    a("s_lshl_b32 s%d, s%d, 8" % (sT1, sCP))
    a("s_add_u32 s%d, s%d, s%d" % (sO0, sO0, sT1))
    a("s_lshl_b32 s%d, s%d, 12" % (sM, sW))
    a("v_lshrrev_b32 v31, 5, v0")
    a("v_lshl_add_u32 v30, v31, 2, v14")
    a("v_lshlrev_b32 v30, 8, v30")
    a("v_xor_b32 v14, s%d, v14" % sW)
    a("v_lshl_add_u32 v30, v14, 6, v30")
    a("v_and_b32 v14, 1, v0")
    a("v_lshl_add_u32 v30, v14, 5, v30")
    a("v_bfe_u32 v14, v0, 1, 1")
    a("v_lshl_add_u32 v30, v14, 3, v30")
    a("v_bfe_u32 v14, v0, 4, 1")
    a("v_lshl_add_u32 v30, v14, 4, v30")
    a("v_add_u32 v%d, %d, v30" % (vWr, AR))
    a("v_lshlrev_b32 v%d, 4, v0" % vL)
    a("v_and_b32 v14, 31, v0")
    a("v_mul_u32_u24 v13, 1792, v14")
    a("v_lshl_add_u32 v13, v31, 5, v13")
    lds_wait_words(a, vSA, 9, 30)
    lds_wait_words(a, vSB, 2, 30)
    a.stamp(5)

    def wodma(s):
        a("s_add_u32 m0, s%d, %d" % (sM, AR + (s % 3) * 16384))
        for qq in range(4):
            a.vm("o%d" % s, "buffer_load_dwordx4 v%d, s[60:63], s%d offen offset:%d%s lds" % (vWo + qq, sO0, 1024 * qq, cfg.nt_in))
        a("s_add_u32 s%d, s%d, %d" % (sO0, sO0, 56 * 896))
    WF = 128
    for s in range(3):
        wodma(s)
    for s in range(8):
        slot = (s % 3) * 16384
        a.wait(vm="o%d" % s, ds="*")
        lds_set_word(a, vMY, 10 + s, 30)
        lds_wait_words(a, vSA, 10 + s, 30)
        for hd in range(2):
            for f in range(2):
                for jj in range(2):
                    a.ds("wo", "ds_read_b64_tr_b16 %s, v%d offset:%d" % (
                        vr(WF + 16 * s + 8 * hd + 4 * f + 2 * jj, 2), vWr, slot + (28 * hd + 16 * f + 8 * jj) * 256))
        if 1 <= s and s + 2 <= 7:
            wodma(s + 2)
    a.wait(ds="*")
    lds_set_word(a, vMY, 18, 30)
    a("s_lshl2_add_u32 s%d, s%d, s%d" % (sT0, sTTo, sW))
    a("s_lshl_b32 s%d, s%d, 7" % (sT1, sT0))
    a("s_add_u32 s%d, s%d, %d" % (sT1, sT1, FOFF + F_O * 128))
    a("v_mov_b32 v15, s%d" % sT1)
    a("s_lshl_b32 s%d, s%d, 13" % (sT0, sT0))
    a("s_add_u32 s%d, s%d, %d" % (sO0, sT0, OOFF))
    a("s_add_u32 s%d, s%d, 4096" % (sO1, sO0))
    a("s_lshl_b32 s%d, s%d, 13" % (sM, sW))
    lds_wait_words(a, vSA, 18, 30)
    a.stamp(6)
    a("s_mov_b64 exec, 1")
    poll_atomic(a, 15, 4, 30)
    a("s_mov_b64 exec, -1")
    a.stamp(7)
    for hf in range(2):
        a("s_add_u32 m0, s%d, %d" % (sM, AR + 4096 * hf))
        for qq in range(4):
            a("buffer_load_dwordx4 v%d, s[24:27], s%d offen offset:%d sc1 lds" % (vL, sO1 if hf else sO0, 1024 * qq))
    a("v_add_u32 v%d, %d, v%d" % (vL, AR, vL))
    a("s_mul_i32 s%d, s%d, %d" % (sT0, sTTo, 32 * 1792))
    a("s_lshl2_add_u32 s%d, s%d, s%d" % (sT1, sCP, sW))
    a("s_lshl_b32 s%d, s%d, 6" % (sT2, sT1))
    a("s_add_u32 s%d, s%d, s%d" % (sT0, sT0, sT2))
    a("s_add_u32 s%d, s%d, 896" % (sT0, sT0))
    a("s_waitcnt vmcnt(0)")
    lds_set_word(a, vMY, 19, 30)
    a("s_cmp_ge_u32 s%d, 14" % sT1)
    a("s_cbranch_scc1 L_A_done")
    lds_wait_words(a, vSA, 19, 30)
    a.stamp(8)
    OB, OC = 64, 48

    def oread(n):
        a.ds("of%d" % n, "ds_read_b128 %s, v%d offset:%d" % (vr(OB + 4 * (n % 8), 4), vL, 1024 * n))
    for n in range(6):
        oread(n)
    for n in range(32):
        a.wait(ds="of%d" % n)
        a("v_mfma_f32_32x32x16_bf16 %s, %s, %s, %s" % (vr(OC, 16), vr(WF + 4 * n, 4), vr(OB + 4 * (n % 8), 4),
                                                      vr(OC, 16) if n else "0"))
        if n + 6 < 32:
            oread(n + 6)
    for f in range(2):
        for d in range(4):
            a("v_cvt_pk_bf16_f32 v%d, v%d, v%d" % (32 + 4 * f + d, OC + 8 * f + 2 * d, OC + 8 * f + 2 * d + 1))
        a("buffer_store_dwordx4 %s, v13, s[28:31], s%d offen offset:%d%s" % (vr(32 + 4 * f, 4), sT0, 16 * f, cfg.out_pol))
    a.stamp(9)
    a("L_A_done:")
    if cfg.stamps:
        a("s_waitcnt vmcnt(0)")
    a.stamp(11)
    a.stamp_flush()
    a("L_end:")
    a("s_endpgm")


HEAD = """; Fused FNet (two-stage DFT factorisation) + sliding-window attention, one launch.
; @launch grid=(256,1,1) block=(512,1,1) lds=%d
.amdgcn_target "amdgcn-amd-amdhsa--gfx950"
.text
.globl %s_kernel
.p2align 8
.type %s_kernel,@function
%s_kernel:
"""
TAIL = """
.section .rodata,"a"
.p2align 6
.amdhsa_kernel %s_kernel
  .amdhsa_next_free_vgpr 256
  .amdhsa_next_free_sgpr 102
  .amdhsa_accum_offset 256
  .amdhsa_group_segment_fixed_size 0
  .amdhsa_kernarg_size 88
  .amdhsa_user_sgpr_count 2
  .amdhsa_user_sgpr_kernarg_segment_ptr 1
  .amdhsa_system_sgpr_workgroup_id_x 1
.end_amdhsa_kernel
"""


def generate(cfg, verbose=False):
    a = G(cfg)
    entry(a)
    b_path(a)
    a_path(a)
    body, n = fix_hazards_fast(a.lines, verbose)
    return HEAD % (LDSSZ, NAME, NAME, NAME) + "\n".join(body) + TAIL % NAME


if __name__ == "__main__":
    cfg = Cfg()
    out = "cdna_kernels/%s.s" % NAME
    verbose = False
    for arg in sys.argv[1:]:
        if arg == "-v":
            verbose = True
        elif arg.startswith("out="):
            out = arg[4:]
        else:
            k, v = arg.split("=", 1)
            cur = getattr(cfg, k)
            if isinstance(cur, bool):
                v = v in ("1", "true")
            elif isinstance(cur, int):
                v = int(v, 0)
            else:
                v = (" " + v.replace("+", " ")) if v else ""
            setattr(cfg, k, v)
    open(out, "w").write(generate(cfg, verbose))
```
